```python
import torch

def _softmax(x, axis=-1):
    return torch.softmax(x, dim=axis)
def _gelu(x):
    return torch.nn.functional.gelu(x, approximate="tanh")
def _silu(x):
    return torch.nn.functional.silu(x)
def _sigmoid(x):
    return torch.sigmoid(x)
def _layernorm(x, axis=-1, eps=1e-5):
    m = x.mean(dim=axis, keepdim=True)
    v = x.var(dim=axis, keepdim=True, unbiased=False)
    return (x - m) / torch.sqrt(v + eps)
def _scatter_add(tgt, idx, src, axis=0):
    return tgt.clone().index_add_(axis, idx, src)
def _segment_sum(src, seg, n):
    out = torch.zeros((n,) + src.shape[1:], dtype=src.dtype)
    return out.index_add_(0, seg, src)
def _pad(x, pw):
    flat = tuple(v for pair in reversed(pw) for v in pair)
    return torch.nn.functional.pad(x, flat)

kernel_name = 'concat_heads__ssm_conv_s4__linear_kernel_hedgehog__prompt'

def setup_inputs():

    _w = (lambda a: (lambda t: t.to(torch.bfloat16) if t.is_floating_point() else t)(torch.as_tensor(a)))
    def _A_setup():
        B, L, D, N = 1, 2048, 512, 128
        A_re = -(lambda _x: torch.exp(torch.as_tensor(_x)))((lambda *s: torch.randn(*s, dtype=torch.bfloat16) * 3.2)(D, N))
        A_im = torch.pi * (lambda *s: torch.randn(*s, dtype=torch.bfloat16) * 0.2)(D, N)
        B_re = (lambda *s: torch.randn(*s, dtype=torch.bfloat16) * 0.4)(D, N)
        B_im = (lambda *s: torch.randn(*s, dtype=torch.bfloat16) * 0.4)(D, N)
        C_re = (lambda *s: torch.randn(*s, dtype=torch.bfloat16) * 0.4)(D, N)
        C_im = (lambda *s: torch.randn(*s, dtype=torch.bfloat16) * 0.4)(D, N)
        log_dt = (lambda *s: torch.randn(*s, dtype=torch.bfloat16) * 0.2)(D) * 0.5 - 4.0
        Dskip = (lambda *s: torch.randn(*s, dtype=torch.bfloat16) * 0.4)(D)
        return {
            "u": _w((lambda *s: torch.randn(*s, dtype=torch.bfloat16) * 0.05)(B, L, D)),
            "A_re": _w(A_re),
            "A_im": _w(A_im),
            "B_re": _w(B_re),
            "B_im": _w(B_im),
            "C_re": _w(C_re),
            "C_im": _w(C_im),
            "log_dt": _w(log_dt),
            "Dskip": _w(Dskip),
        }
    _A_in = _A_setup()

    def _B_setup():
        B, S, D, H = 1, 2048, 512, 32
        Dh = D // H
        return {
            "x": _w((lambda *s: torch.randn(*s, dtype=torch.bfloat16) * 0.4)(B, S, D)),
            "wqkv": _w((lambda *s: torch.randn(*s, dtype=torch.bfloat16) * 0.4)(D, 3 * D)),
            "w_phi": _w((lambda *s: torch.randn(*s, dtype=torch.bfloat16) * 0.4)(H, Dh, Dh) * (Dh ** -0.5)),
            "wo": _w((lambda *s: torch.randn(*s, dtype=torch.bfloat16) * 0.05)(D, D)),
        }
    _B_in = _B_setup()

    return {
        "A_u": _A_in["u"],
        "A_A_re": _A_in["A_re"],
        "A_A_im": _A_in["A_im"],
        "A_B_re": _A_in["B_re"],
        "A_B_im": _A_in["B_im"],
        "A_C_re": _A_in["C_re"],
        "A_C_im": _A_in["C_im"],
        "A_log_dt": _A_in["log_dt"],
        "A_Dskip": _A_in["Dskip"],
        "B_x": _B_in["x"],
        "B_wqkv": _B_in["wqkv"],
        "B_w_phi": _B_in["w_phi"],
        "B_wo": _B_in["wo"],
    }

def reference(A_u, A_A_re, A_A_im, A_B_re, A_B_im, A_C_re, A_C_im, A_log_dt, A_Dskip, B_x, B_wqkv, B_w_phi, B_wo):
    def _A_ref(u, A_re, A_im, B_re, B_im, C_re, C_im, log_dt, Dskip):
        Bsz, L, D = u.shape
        dt = torch.exp(log_dt)[:, None]
        A = A_re + 1j * A_im
        Bc = B_re + 1j * B_im
        Cc = C_re + 1j * C_im
        logdA = dt * A
        dB = dt * Bc
        l = (lambda x, dt: x.to(dt))(torch.arange(L), A_re.dtype)
        P = torch.exp(logdA[:, :, None] * l[None, None, :])
        K = torch.einsum("dn,dnl,dn->dl", Cc, P, dB).real
        L2 = 2 * L
        Kp = _pad(K, ((0, 0), (0, L)))
        up = (lambda x, *d: x.permute(*d))(u, 0, 2, 1)
        up = _pad(up, ((0, 0), (0, 0), (0, L)))
        Kf = (lambda x, axes=(-2,-1): torch.fft.rfft2(x.float(), dim=axes))(Kp[:, None, :], axes=(-2, -1))
        Uf = (lambda x, axes=(-2,-1): torch.fft.rfft2(x.float(), dim=axes))(up[:, :, None, :], axes=(-2, -1))
        Yf = Uf * Kf[None, :, :, :]
        y = (lambda x, s, axes=(-2,-1): torch.fft.irfft2(x, s=s, dim=axes).to(torch.bfloat16))(Yf, (1, L2), axes=(-2, -1))[:, :, 0, :L]
        y = (lambda x, *d: x.permute(*d))(y, 0, 2, 1) + u * Dskip[None, None, :]
        return y

    def _B_ref(x, wqkv, w_phi, wo):
        B, S, D = x.shape
        H = 32; Dh = D // H
        qkv = (lambda x, *d: x.permute(*d))((x @ wqkv).reshape(B, S, 3, H, Dh), 2, 0, 3, 1, 4)
        q, k, v = qkv[0], qkv[1], qkv[2]
        pq = torch.einsum("bhsd,hdf->bhsf", q, w_phi)
        pk = torch.einsum("bhsd,hdf->bhsf", k, w_phi)
        phi_q = torch.concatenate([_softmax(pq, axis=-1), _softmax(-pq, axis=-1)], axis=-1)
        phi_k = torch.concatenate([_softmax(pk, axis=-1), _softmax(-pk, axis=-1)], axis=-1)
        kv = torch.einsum("bhsf,bhsd->bhfd", phi_k, v)
        z  = torch.einsum("bhsf->bhf", phi_k)
        num = torch.einsum("bhqf,bhfd->bhqd", phi_q, kv)
        den = torch.einsum("bhqf,bhf->bhq", phi_q, z)[..., None] + 1e-6
        o = num / den
        return (lambda x, *d: x.permute(*d))(o, 0, 2, 1, 3).reshape(B, S, D) @ wo

    a = _A_ref(A_u, A_A_re, A_A_im, A_B_re, A_B_im, A_C_re, A_C_im, A_log_dt, A_Dskip)
    b = _B_ref(B_x, B_wqkv, B_w_phi, B_wo)
    return torch.concatenate([a, b], axis=-1)
```

```python
import re

REG = re.compile(r'(?<![\w.])([vas])(\d+)(?![\w\[])|(?<![\w.])([vas])\[(\d+):(\d+)\]|(?<![\w.])(vcc|exec|m0)(?![\w])')
TRANS = ("v_exp_f32", "v_log_f32", "v_rcp_f32", "v_rsq_f32", "v_sqrt_f32", "v_sin_f32", "v_cos_f32")


def regs_of(op):
    out = set()
    for m in REG.finditer(op):
        if m.group(1):
            out.add((m.group(1), int(m.group(2))))
        elif m.group(3):
            for i in range(int(m.group(4)), int(m.group(5)) + 1):
                out.add((m.group(3), i))
        else:
            out.add((m.group(6), 0))
    return out


def split_ops(rest):
    ops, depth, cur = [], 0, ""
    for ch in rest:
        if ch == "[":
            depth += 1
        if ch == "]":
            depth -= 1
        if ch == "," and depth == 0:
            ops.append(cur.strip())
            cur = ""
        else:
            cur += ch
    if cur.strip():
        ops.append(cur.strip())
    return ops


class Ins:
    pass


def decode(text):
    t = text.strip()
    parts = t.split(None, 1)
    op = parts[0]
    ops = split_ops(parts[1]) if len(parts) > 1 else []
    if ops:
        last = ops[-1].split()
        if last and not re.match(r'^(offset|op_sel|neg_|row_|quad_|bank_|sc0|sc1|nt|offen|lds|bitop3)', last[0]):
            ops[-1] = last[0]
            mods = " ".join(last[1:])
        else:
            mods = ops[-1]
            ops = ops[:-1]
    else:
        mods = ""
    i = Ins()
    i.text, i.op, i.ops, i.mods = t, op, ops, mods
    i.kind = "other"
    R = [regs_of(o) for o in ops]
    allr = set().union(*R) if R else set()
    i.rd, i.wr = set(), set()
    i.srcc = set()
    i.passes = 0
    if op.startswith("v_mfma"):
        i.kind = "mfma"
        i.wr = R[0]
        i.rd = R[1] | R[2] | R[3]
        i.ab = R[1] | R[2]
        i.srcc = R[3]
        i.passes = 8 if "32x32" in op else 4
    elif op.startswith("v_cmp"):
        i.kind = "valu"
        i.wr = R[0]
        i.rd = set().union(*R[1:])
    elif op.startswith("v_permlane"):
        i.kind = "valu"
        i.wr = R[0] | R[1]
        i.rd = R[0] | R[1]
    elif op.startswith("v_"):
        i.kind = "valu"
        i.wr = set(R[0])
        i.rd = set().union(*R[1:]) if len(R) > 1 else set()
        if op.startswith(("v_fmac", "v_pk_fmac", "v_dot2c", "v_writelane")) or "dpp" in op or "row_" in mods or "quad_" in mods:
            i.rd |= R[0]
        if op.startswith(("v_add_co", "v_sub_co", "v_addc_co", "v_subb_co")):
            i.wr |= R[1]
            i.rd = set().union(*R[2:])
    elif op.startswith("ds_read") or op.startswith("ds_bpermute") or op.startswith("ds_swizzle"):
        i.kind = "dsr"
        i.wr = R[0]
        i.rd = set().union(*R[1:]) if len(R) > 1 else set()
    elif op.startswith("ds_"):
        i.kind = "dsw"
        i.rd = allr
        if "addtid" in op:
            i.rd = i.rd | {("m0", 0)}
    elif op.startswith("global_load_lds") or (op.startswith("buffer_load") and "lds" in mods.split()):
        i.kind = "dma"
        i.rd = allr | {("m0", 0)}
    elif op.startswith(("global_load", "buffer_load")):
        i.kind = "vld"
        i.wr = R[0]
        i.rd = set().union(*R[1:])
        if "d16" in op:
            i.rd |= R[0]
    elif op.startswith(("global_store", "buffer_store", "global_atomic")):
        i.kind = "vst"
        i.rd = allr
        i.wide = ("x4" in op or "x3" in op)
        i.data = R[1] if op.startswith("global") else R[0]
    elif op.startswith(("s_load", "s_memtime", "s_memrealtime")):
        i.kind = "smem"
        i.wr = R[0]
        i.rd = set().union(*R[1:]) if len(R) > 1 else set()
    elif op.startswith(("s_cmp", "s_cbranch", "s_branch", "s_barrier", "s_waitcnt", "s_nop", "s_sleep", "s_setprio", "s_endpgm", "s_bitcmp")):
        i.kind = "sctl"
        i.rd = allr
        if "vcc" in op:
            i.rd = i.rd | {("vcc", 0)}
    elif op.startswith("s_"):
        i.kind = "salu"
        i.wr = set(R[0]) if R else set()
        i.rd = set().union(*R[1:]) if len(R) > 1 else set()
        if "saveexec" in op:
            i.wr |= {("exec", 0)}
            i.rd |= {("exec", 0)}
        if op.startswith(("s_addk", "s_mulk", "s_bitset")):
            i.rd |= R[0]
    else:
        raise ValueError("unknown instruction " + t)
    i.trans = op.replace("_e32", "").replace("_e64", "") in TRANS
    return i


def isv(r):
    return r[0] in ("v", "a")


def iss(r):
    return r[0] in ("s", "vcc", "exec")


class Asm:
    def __init__(self):
        self.out = []
        self.pos = 0
        self.hist = []
        self.vm = []
        self.lg = []
        self.nid = 0
        self.nops = 0
        self.count = 0

    def raw(self, s):
        self.out.append(s)

    def comment(self, s):
        self.out.append("    ; " + s)

    def label(self, name):
        self.settle()
        self.out.append(name + ":")

    def settle(self):
        need = 0
        for p, h in self.hist:
            w = 0
            if h.kind == "mfma":
                w = 12 if h.passes == 8 else 8
            elif h.kind == "valu":
                w = 5 if any(iss(r) for r in h.wr) else 2
            elif h.kind == "vst" and h.wide:
                w = 2
            elif h.kind == "salu" and ("m0", 0) in h.wr:
                w = 1
            need = max(need, w - (self.pos - p - 1))
        self._nop(need)

    def _nop(self, n):
        while n > 0:
            k = min(n, 16)
            self.out.append(f"    s_nop {k - 1}")
            self.pos += k
            self.nops += k
            n -= k

    def _need(self, c):
        need = 0
        for p, h in self.hist:
            d = self.pos - p - 1
            if d >= 20:
                continue
            w = 0
            touch = c.rd | c.wr
            if h.kind == "valu":
                vw = {r for r in h.wr if isv(r)}
                sw = {r for r in h.wr if iss(r)}
                if vw & c.rd:
                    if c.kind == "mfma":
                        w = max(w, 2)
                    if c.op.startswith(("v_readlane", "v_readfirstlane")):
                        w = max(w, 1)
                    if c.op.startswith("v_permlane") or "dpp" in c.op or "row_" in c.mods or "quad_" in c.mods:
                        w = max(w, 2)
                    if h.trans:
                        w = max(w, 1)
                if sw & c.rd:
                    if c.kind in ("valu", "mfma"):
                        w = max(w, 2)
                    if c.kind in ("vld", "vst", "dma"):
                        w = max(w, 5)
                    if c.kind in ("salu", "sctl", "smem"):
                        w = max(w, 1)
            elif h.kind == "mfma":
                big = 12 if h.passes == 8 else 8
                if c.kind == "mfma":
                    if h.wr & c.ab:
                        w = max(w, big)
                    if h.wr & c.srcc and not (h.wr == c.srcc and h.passes == c.passes):
                        w = max(w, big - 2)
                    if h.wr & c.wr and not (h.wr == c.srcc and h.passes == c.passes):
                        w = max(w, big - 2)
                elif h.wr & touch:
                    w = max(w, big)
                if c.kind in ("valu", "dsr", "vld") and h.srcc & c.wr:
                    w = max(w, 7 if h.passes == 8 else 3)
            elif h.kind == "vst" and h.wide:
                if h.data & c.wr:
                    w = max(w, 2)
            elif h.kind == "salu":
                if ("m0", 0) in h.wr and ("m0", 0) in c.rd and c.kind in ("dma", "dsw"):
                    w = max(w, 1)
            need = max(need, w - d)
        return need

    def _wait(self, vm=None, lg=None):
        s = []
        if vm is not None:
            vm = min(vm, 63)
            if vm < len(self.vm):
                self.vm = self.vm[len(self.vm) - vm:] if vm else []
                s.append(f"vmcnt({vm})")
        if lg is not None:
            if any(e["smem"] for e in self.lg):
                lg = 0
            lg = min(lg, 15)
            if lg < len(self.lg):
                self.lg = self.lg[len(self.lg) - lg:] if lg else []
                s.append(f"lgkmcnt({lg})")
        if s:
            self.out.append("    s_waitcnt " + " ".join(s))
            self.pos += 1
            self.count += 1

    def wait_vm(self, tok=None):
        if tok is None:
            return self._wait(vm=0)
        ids = [e["id"] for e in self.vm]
        if tok in ids:
            self._wait(vm=len(ids) - 1 - ids.index(tok))

    def wait_lg(self, tok=None):
        if tok is None:
            return self._wait(lg=0)
        ids = [e["id"] for e in self.lg]
        if tok in ids:
            self._wait(lg=len(ids) - 1 - ids.index(tok))

    def wait_all(self):
        self._wait(vm=0, lg=0)

    def forget(self):
        self.vm, self.lg = [], []

    def __call__(self, text):
        tok = None
        for line in text.split("\n"):
            line = line.split(";")[0].strip()
            if line:
                tok = self._one(line)
        return tok

    def _one(self, text):
        c = decode(text)
        touch = c.rd | c.wr
        vmn = lgn = None
        for k, e in enumerate(self.vm):
            if e["regs"] & touch:
                vmn = len(self.vm) - 1 - k
        for k, e in enumerate(self.lg):
            if e["regs"] & touch:
                lgn = len(self.lg) - 1 - k
        if vmn is not None or lgn is not None:
            self._wait(vm=vmn, lg=lgn)
        self._nop(self._need(c))
        self.out.append("    " + text)
        self.hist.append((self.pos, c))
        self.hist = self.hist[-24:]
        self.count += 1
        if c.op == "s_nop":
            self.pos += int(c.ops[0]) + 1
        else:
            self.pos += 1
        self.nid += 1
        if c.kind in ("vld", "vst", "dma"):
            assert len(self.vm) < 63, "too many vmem ops in flight"
            self.vm.append(dict(id=self.nid, regs=set(c.wr)))
        elif c.kind in ("dsr", "dsw", "smem"):
            self.lg.append(dict(id=self.nid, regs=set(c.wr), smem=(c.kind == "smem")))
        return self.nid

    def text(self):
        return "\n".join(self.out) + "\n"


def vr(b, n=1, p="v"):
    return f"{p}{b}" if n == 1 else f"{p}[{b}:{b + n - 1}]"


def ar(b, n=1):
    return vr(b, n, "a")


def sr(b, n=1):
    return vr(b, n, "s")
```

```python
from gen_common import *

CH = 33792
ROW = 528
CS = 4160
RED = 16640
YRE = RED + 8192
UB = 0
UL = 4608
CB0 = 2 * UL

sA, sCG, sJ, sW, sC, sMH, sT0, sT1, sT2, sTAG, sCNT, sLD, sDS, sE = 36, 37, 38, 39, 40, 41, 42, 43, 44, 45, 46, 47, 48, 49
sPE, sPO, sK0, sK1, sK2, sK3 = 50, 51, 52, 53, 54, 55
sM0, sM1, sM2 = 56, 58, 60


def cmul(a, d, x, y, t):
    a(f"v_pk_mul_f32 {vr(t,2)}, {vr(x,2)}, {vr(y,2)} op_sel:[1,1] op_sel_hi:[1,0] neg_lo:[0,1]")
    a(f"v_pk_fma_f32 {vr(d,2)}, {vr(x,2)}, {vr(y,2)}, {vr(t,2)} op_sel:[0,0,0] op_sel_hi:[0,1,1]")


def transpose(a, r0, r1, tmp, vw, vr0, vr1, dst, tb):
    for i in range(8):
        a(f"v_perm_b32 v{tmp+i}, v{r1+i//2}, v{r0+i//2}, s{sPO if i & 1 else sPE}")
    for i in range(8):
        a(f"ds_write_b32 v{vw}, v{tmp+i} offset:{tb + i*128}")
    a.wait_lg()
    a("s_barrier")
    a(f"ds_read_b128 {vr(dst,4)}, v{vr0} offset:{tb}")
    a(f"ds_read_b128 {vr(dst+4,4)}, v{vr1} offset:{tb}")


def gen_a(a):
    vL, vM, vP = 1, 2, 3
    vTW, vTR0, vTR1 = 4, 5, 6
    vT, vT2, vT3, vTAG = 7, 8, 9, 10
    a(f"s_sub_u32 s{sA}, s2, 256")
    a(f"s_and_b32 s{sCG}, s{sA}, 7")
    a(f"s_lshr_b32 s{sJ}, s{sA}, 3")
    a(f"v_lshrrev_b32 v{vT}, 6, v0")
    a(f"v_and_b32 v{vL}, 63, v0")
    a(f"v_readfirstlane_b32 s{sW}, v{vT}")
    a(f"v_lshrrev_b32 v{vM}, 3, v{vL}")
    a(f"v_and_b32 v{vP}, 7, v{vL}")
    a(f"s_lshr_b32 s{sC}, s{sW}, 1")
    a(f"s_and_b32 s{sMH}, s{sW}, 1")
    a(f"s_lshl_b32 s{sT0}, s{sJ}, 16")
    a(f"s_lshl_b32 s{sT1}, s{sW}, 14")
    a(f"s_add_u32 s{sT0}, s{sT0}, s{sT1}")
    a(f"s_lshl_b32 s{sT1}, s{sCG}, 7")
    a(f"s_add_u32 s{sT0}, s{sT0}, s{sT1}")
    a(f"v_lshlrev_b32 v{vT}, 11, v{vM}")
    a(f"v_lshl_add_u32 v{vT}, v{vP}, 4, v{vT}")
    a(f"v_add_u32 v{vT}, s{sT0}, v{vT}")
    a(f"s_lshl_b32 s{sT0}, s{sCG}, 6")
    a(f"s_lshl_b32 s{sT1}, s{sJ}, 1")
    a(f"s_add_u32 s{sT0}, s{sT0}, s{sT1}")
    a(f"s_lshl_b32 s{sT2}, s{sT0}, 1")
    a(f"s_lshl_b32 s{sT0}, s{sT0}, 8")
    a(f"s_lshl_b32 s{sT1}, s{sW}, 7")
    a(f"s_add_u32 s{sT0}, s{sT0}, s{sT1}")
    a(f"v_lshl_add_u32 v{vT2}, v{vL}, 1, s{sT0}")
    a(f"s_lshl_b32 s{sT1}, s{sCG}, 7")
    a(f"s_add_u32 s{sT1}, s{sT1}, {FL_EA}")
    a.wait_lg()
    R0, R1 = 12, 16
    a(f"global_load_dwordx4 {vr(R0,4)}, v{vT}, {sr(S_U,2)}")
    a(f"global_load_dwordx4 {vr(R1,4)}, v{vT}, {sr(S_U,2)} offset:1024")
    a(f"s_load_dword s{sE}, {sr(S_WS,2)}, s{sT1}")
    a(f"s_load_dword s{sLD}, {sr(S_LDT,2)}, s{sT2}")
    a(f"s_load_dword s{sDS}, {sr(S_DSK,2)}, s{sT2}")
    PAR = 32
    for k, s in enumerate((S_ARE, S_AIM, S_BRE, S_BIM, S_CRE, S_CIM)):
        a(f"global_load_ushort v{PAR+k}, v{vT2}, {sr(s,2)}")
    a(f"s_mov_b32 s{sPE}, 0x05040100")
    a(f"s_mov_b32 s{sPO}, 0x07060302")
    a(f"v_lshrrev_b32 v{vT}, 2, v{vM}")
    a(f"s_lshl_b32 s{sT0}, s{sW}, 1")
    a(f"v_add_u32 v{vT}, s{sT0}, v{vT}")
    a(f"v_xor_b32 v{vT}, v{vT}, v{vP}")
    a(f"v_lshlrev_b32 v{vT}, 4, v{vT}")
    a(f"v_lshl_add_u32 v{vT}, v{vP}, 10, v{vT}")
    a(f"v_and_b32 v{vT3}, 3, v{vM}")
    a(f"v_lshl_add_u32 v{vTW}, v{vT3}, 2, v{vT}")
    a(f"v_xor_b32 v{vT}, s{sT0}, v{vP}")
    a(f"v_lshlrev_b32 v{vT}, 4, v{vT}")
    a(f"v_lshl_add_u32 v{vT}, v{vM}, 7, v{vT}")
    a(f"s_lshl_b32 s{sT1}, s{sW}, 11")
    a(f"v_add_u32 v{vTR0}, s{sT1}, v{vT}")
    a(f"v_xor_b32 v{vTR1}, 16, v{vTR0}")
    a(f"v_add_u32 v{vTR1}, 1024, v{vTR1}")
    vS0, vS1 = 28, 29
    a(f"s_lshl_b32 s{sT0}, s{sCG}, 18")
    a(f"s_lshl_b32 s{sT1}, s{sW}, 16")
    a(f"s_add_u32 s{sT0}, s{sT0}, s{sT1}")
    a(f"s_lshl_b32 s{sT1}, s{sJ}, 7")
    a(f"s_add_u32 s{sT0}, s{sT0}, s{sT1}")
    a(f"v_lshlrev_b32 v{vT}, 12, v{vM}")
    a(f"v_lshl_add_u32 v{vT}, v{vP}, 4, v{vT}")
    a(f"v_add_u32 v{vS0}, s{sT0}, v{vT}")
    a(f"v_add_u32 v{vS1}, 0x8000, v{vS0}")
    a.wait_lg()
    a(f"s_mul_i32 s{sTAG}, s{sE}, {TAG_MUL}")
    a(f"s_add_u32 s{sTAG}, s{sTAG}, {TAG_ADD}")
    a(f"v_mov_b32 v{vTAG}, s{sTAG}")
    stamp(a, 1)
    transpose(a, R0, R1, 20, vTW, vTR0, vTR1, 12, UB)
    a(f"global_store_dwordx4 v{vS0}, {vr(12,4)}, {sr(S_WS,2)} sc1")
    a(f"global_store_dwordx4 v{vS1}, {vr(16,4)}, {sr(S_WS,2)} sc1")
    stamp(a, 2)

    a(f"s_lshl_b32 s{sT0}, s{sC}, 4")
    a(f"s_lshr_b32 s{sLD}, s{sLD}, s{sT0}")
    a(f"s_lshl_b32 s{sLD}, s{sLD}, 16")
    a(f"s_lshr_b32 s{sDS}, s{sDS}, s{sT0}")
    a(f"s_lshl_b32 s{sDS}, s{sDS}, 16")
    a(f"s_mov_b32 s{sK0}, 0x3fb8aa3b")
    a(f"s_mov_b32 s{sK1}, 0x32a57060")
    a(f"s_mov_b32 s{sK2}, 0x3f317218")
    vDT, vA, vB_ = 20, 21, 22
    a(f"v_mov_b32 v{vT3}, s{sLD}")
    a(f"v_mul_f32 v{vT}, s{sK0}, v{vT3}")
    a(f"v_fma_f32 v{vT2}, v{vT3}, s{sK0}, -v{vT}")
    a(f"v_fma_f32 v{vT2}, v{vT3}, s{sK1}, v{vT2}")
    a(f"v_exp_f32 v{vT}, v{vT}")
    a(f"v_mul_f32 v{vT2}, s{sK2}, v{vT2}")
    a(f"v_fma_f32 v{vT}, v{vT}, v{vT2}, v{vT}")
    a(f"v_cvt_pk_bf16_f32 v{vT}, v{vT}, v{vT}")
    a(f"v_lshlrev_b32 v{vDT}, 16, v{vT}")
    for k in range(6):
        a(f"v_lshlrev_b32 v{PAR+k}, 16, v{PAR+k}")
    a(f"v_mul_f32 v{vA}, v{vDT}, v{PAR}")
    a(f"v_mul_f32 v{vB_}, v{vDT}, v{PAR+1}")
    a(f"v_mul_f32 v{PAR+2}, v{vDT}, v{PAR+2}")
    a(f"v_mul_f32 v{PAR+3}, v{vDT}, v{PAR+3}")
    a(f"v_mul_f32 v{vA}, s{sK0}, v{vA}")
    a(f"v_mul_f32 v{vB_}, 0.15915494, v{vB_}")
    Z1, W8, Z256 = 40, 42, 44
    E3, P3 = 24, 46
    for k, tau in enumerate((1.0, 8.0, 256.0)):
        if k == 0:
            a(f"v_exp_f32 v{E3}, v{vA}")
            a(f"v_fract_f32 v{P3}, v{vB_}")
        else:
            lit = {8.0: "0x41000000", 256.0: "0x43800000"}[tau]
            a(f"v_mul_f32 v{E3+k}, {lit}, v{vA}")
            a(f"v_mul_f32 v{P3+k}, {lit}, v{vB_}")
            a(f"v_exp_f32 v{E3+k}, v{E3+k}")
            a(f"v_fract_f32 v{P3+k}, v{P3+k}")
    for k, z in enumerate((Z1, W8, Z256)):
        a(f"v_cos_f32 v{z}, v{P3+k}")
        a(f"v_sin_f32 v{z+1}, v{P3+k}")
    for k, z in enumerate((Z1, W8, Z256)):
        a(f"v_mul_f32 v{z}, v{E3+k}, v{z}")
        if z == W8:
            a(f"v_mul_f32_e64 v{z+1}, -v{E3+k}, v{z+1}")
        else:
            a(f"v_mul_f32 v{z+1}, v{E3+k}, v{z+1}")
    a(f"s_mul_i32 s{sK3}, s{sC}, {CH}")
    a(f"s_add_u32 s{sK3}, s{sK3}, {CB0}")
    a(f"s_lshl_b32 s{sT1}, s{sMH}, 8")
    a(f"s_add_u32 m0, s{sK3}, s{sT1}")
    XB = 50
    xreg = {}
    nx = [XB]

    def newx(key):
        xreg[key] = nx[0]
        nx[0] += 2
        return xreg[key]
    slot = {}
    for t in range(11):
        slot[t] = (0, t)
    for k, o in enumerate((0, 2, 4, 6, 8, 10)):
        slot[256 + o] = (1, k)
    for k, o in enumerate((0, 4, 8)):
        slot[512 + o] = (1, 6 + k)
        slot[768 + o] = (1, 9 + k)
    for B, h, r in ((1024, 0, 12), (1280, 0, 14), (1536, 1, 12), (1792, 1, 14)):
        slot[B] = (h, r)
        slot[B + 8] = (h, r + 1)
    xops = [(0, None, None)]
    xops += [(t, t - 1, Z1) for t in range(1, 11)]
    xops += [(256 + o, o, Z256) for o in (0, 2, 4, 6, 8, 10)]
    xops += [(512 + o, 256 + o, Z256) for o in (0, 4, 8)]
    xops += [(768 + o, 512 + o, Z256) for o in (0, 4, 8)]
    for B in (1024, 1280, 1536, 1792):
        xops += [(B + o, B - 256 + o, Z256) for o in (0, 8)]
    TX, TY, YA, YB = 26, 30, 112, 114
    PK = 116
    npk = [0]

    def put(src, row):
        p = PK + (npk[0] % 4)
        npk[0] += 1
        a(f"v_cvt_pk_bf16_f32 v{p}, v{src}, v{src+1}")
        a(f"ds_write_addtid_b32 v{p} offset:{row*ROW}")
    a(f"v_mov_b32 v{PK+3}, 0x3f80")
    a(f"ds_write_addtid_b32 v{PK+3} offset:{32*ROW}")
    put(W8, 33)
    ycur = W8
    vFU = 11
    for n in range(31):
        key, src, z = xops[n]
        d = newx(key)
        if src is None:
            cmul(a, d, PAR + 4, PAR + 2, TX)
        else:
            cmul(a, d, xreg[src], z, TX)
        if n < 30:
            yn = YA if n % 2 == 0 else YB
            cmul(a, yn, ycur, W8, TY)
            ycur = yn
        h, r = slot[key]
        put(d, 8 * (r >> 2) + 4 * h + (r & 3))
        if n < 30:
            put(ycur, 34 + n)
        if n == 14:
            a.comment("publish this wave's part of the transposed u tile")
            a(f"s_lshl_b32 s{sT0}, s{sCG}, 9")
            a(f"s_lshl_b32 s{sT1}, s{sW}, 7")
            a(f"s_add_u32 s{sT0}, s{sT0}, s{sT1}")
            a(f"s_lshl_b32 s{sT1}, s{sJ}, 2")
            a(f"s_add_u32 s{sT0}, s{sT0}, s{sT1}")
            a(f"s_add_u32 s{sT0}, s{sT0}, {FL_FU}")
            a(f"v_mov_b32 v{vFU}, s{sT0}")
            a.wait_vm()
            store_flag(a, vFU, vTAG, S_WS)
    assert nx[0] <= 112
    stamp(a, 3)
    vKA = 20
    a(f"v_and_b32 v{vT}, 31, v{vL}")
    a(f"v_lshrrev_b32 v{vT2}, 5, v{vL}")
    a(f"v_mul_u32_u24 v{vKA}, {ROW}, v{vT}")
    a(f"v_lshl_add_u32 v{vKA}, v{vT2}, 4, v{vKA}")
    a(f"v_add_u32 v{vKA}, s{sK3}, v{vKA}")
    a(f"s_lshl_b32 s{sT0}, s{sCG}, 9")
    a(f"s_lshr_b32 s{sT1}, s{sJ}, 3")
    a(f"s_lshl_b32 s{sT1}, s{sT1}, 7")
    a(f"s_add_u32 s{sT0}, s{sT0}, s{sT1}")
    a(f"s_add_u32 s{sT0}, s{sT0}, {FL_FU}")
    a(f"v_lshl_add_u32 v{vFU}, v{vT}, 2, s{sT0}")
    vK, vK3 = 21, 22
    a(f"v_lshlrev_b32 v{vK}, 4, v{vT}")
    a(f"s_add_u32 s{sT0}, s{sK3}, {4112 - 3584}")
    a(f"v_sub_u32 v{vK}, s{sT0}, v{vK}")
    a(f"v_lshlrev_b32 v{vT2}, 10, v{vT2}")
    a(f"v_sub_u32 v{vK3}, v{vK}, v{vT2}")
    a.wait_lg()
    a("s_barrier")
    D = 32
    FA, FB = 48, 80
    NPF = 6
    for st in range(16 + NPF):
        if st < 16:
            a(f"ds_read_b128 {vr(FA+4*(st%8),4)}, v{vKA} offset:{32*st}")
            a(f"ds_read_b128 {vr(FB+4*(st%8),4)}, v{vKA} offset:{32*ROW+32*st}")
        if st >= NPF:
            k = st - NPF
            a(f"v_mfma_f32_32x32x16_bf16 {vr(D,16)}, {vr(FA+4*(k%8),4)}, {vr(FB+4*(k%8),4)}, {vr(D,16) if k else 0}")
    stamp(a, 4)
    poll_flags(a, "A_fu", vFU, vT3, S_WS, sTAG, sCNT)
    UR = 12
    a(f"s_lshl_b32 s{sT0}, s{sCG}, 6")
    a(f"s_lshl_b32 s{sT1}, s{sJ}, 1")
    a(f"s_add_u32 s{sT0}, s{sT0}, s{sT1}")
    a(f"s_lshl_b32 s{sT0}, s{sT0}, 12")
    a(f"s_lshl_b32 s{sT1}, s{sW}, 11")
    a(f"s_add_u32 s{sT0}, s{sT0}, s{sT1}")
    vUG = 23
    a(f"v_lshl_add_u32 v{vUG}, v{vL}, 4, s{sT0}")
    a(f"global_load_dwordx4 {vr(UR,4)}, v{vUG}, {sr(S_WS,2)} sc1")
    a(f"global_load_dwordx4 {vr(UR+4,4)}, v{vUG}, {sr(S_WS,2)} offset:1024 sc1")
    a(f"s_or_b32 s{sT0}, s{sJ}, s{sW}")
    a(f"s_cmp_lg_u32 s{sT0}, 0")
    a.settle()
    a("s_cbranch_scc1 A_noep")
    a(f"s_lshl_b32 s{sT1}, s{sCG}, 7")
    a(f"s_add_u32 s{sT1}, s{sT1}, {FL_EA}")
    a(f"v_mov_b32 v{vT3}, s{sT1}")
    a.raw("    s_mov_b64 exec, 1")
    a.raw(f"    global_store_dword v{vT3}, v{vTAG}, {sr(S_WS,2)} sc1")
    a.raw("    s_mov_b64 exec, -1")
    a.label("A_noep")
    stamp(a, 5)
    a("s_barrier")
    a(f"s_mov_b32 s{sM0}, 0x80000000")
    a(f"s_mov_b32 s{sM0+1}, 0")
    a(f"s_mov_b32 s{sM1}, 0")
    a(f"s_mov_b32 s{sM1+1}, 0x80000000")
    a(f"s_mov_b32 s{sM2}, 0xaaaaaaaa")
    a(f"s_mov_b32 s{sM2+1}, 0xaaaaaaaa")
    TA, TB_ = 48, 49
    a(f"v_cndmask_b32 v{D+9}, v{D+9}, v{D+8}, {sr(sM0,2)}")
    a(f"v_cndmask_b32 v{D+5}, v{D+5}, v{D+4}, {sr(sM1,2)}")
    a(f"v_cndmask_b32 v{TA}, v{D+12}, v{D+13}, {sr(sM2,2)}")
    a(f"v_cndmask_b32 v{TB_}, v{D+14}, v{D+15}, {sr(sM2,2)}")
    m1 = [0, 0, 1, 2, 2, 2, 3, 4, 4, 4, 5]
    m2 = [0, 0, 0, 1, 1, 1, 2, 2, 2, 2, 2]
    types = [
        (lambda o: D + o, 0, vK, "lo"),
        (lambda o: D + m1[o], 256, vK, "hi"),
        (lambda o: D + 6 + m2[o], 512, vK, "hi"),
        (lambda o: D + 9 + m2[o], 768, vK, "hi"),
        (lambda o: D + 12 if o < 4 else (TA if o == 4 else D + 13), 1024, vK3, "all"),
        (lambda o: D + 14 if o < 4 else (TB_ if o == 4 else D + 15), 1280, vK3, "all"),
    ]
    CB = 52
    ZR = 112
    for k in range(4):
        a(f"v_mov_b32 v{ZR+k}, 0")
    a(f"v_mov_b32 v{vT3}, s{sK3}")
    a(f"s_cmp_eq_u32 s{sMH}, 1")
    a.settle()
    a("s_cbranch_scc1 A_exp1")
    vm_save = list(a.vm)
    for mh in range(2):
        if mh == 1:
            a("s_branch A_exp_done")
            a.label("A_exp1")
            a.vm = list(vm_save)
        n = 0
        regs = {}
        for s in (2 * mh, 2 * mh + 1):
            for ti, (src, B, va, ex) in enumerate(types):
                c = CB + 4 * n
                n += 1
                regs[(s, ti)] = c
                for m in range(4):
                    a(f"v_cvt_pk_bf16_f32 v{c+m}, v{src(10-s-2*m)}, v{src(9-s-2*m)}")
            c = CB + 4 * n
            n += 1
            regs[(s, 6)] = c
            for m in range(4):
                lo, hi = 2 - s - 2 * m, 1 - s - 2 * m
                if lo < 0:
                    a(f"v_mov_b32 v{c+m}, 0")
                else:
                    a(f"v_cvt_pk_bf16_f32 v{c+m}, v{D+lo}, {('v%d' % (D+hi)) if hi >= 0 else '0'}")
        assert CB + 4 * n <= ZR
        for ex, lo, hi in (("all", -1, -1), ("lo", -1, 0), ("hi", 0, -1)):
            if ex != "all":
                a(f"s_mov_b32 exec_lo, {lo}".replace("exec_lo", "exec_lo"))
                a(f"s_mov_b32 exec_hi, {hi}")
            for s in (2 * mh, 2 * mh + 1):
                for ti, (src, B, va, e2) in enumerate(types):
                    if e2 == ex:
                        a(f"ds_write_b128 v{va}, {vr(regs[(s,ti)],4)} offset:{s*CS + 3584 - 2*B}")
        a("s_mov_b64 exec, 1")
        for s in (2 * mh, 2 * mh + 1):
            a(f"ds_write_b128 v{vT3}, {vr(regs[(s,6)],4)} offset:{s*CS + 4128}")
            a(f"ds_write_b128 v{vT3}, {vr(ZR,4)} offset:{s*CS + 4144}")
        a("s_mov_b64 exec, -1")
        a.wait_lg()
    a.label("A_exp_done")
    a(f"s_mul_i32 s{sT0}, s{sC}, {UL}")
    a(f"s_add_u32 s{sK2}, s{sT0}, {UB}")
    a(f"s_lshl_b32 s{sT1}, s{sMH}, 11")
    a(f"s_add_u32 s{sT0}, s{sK2}, s{sT1}")
    a(f"v_lshl_add_u32 v{vT}, v{vL}, 4, s{sT0}")
    a(f"s_lshl_b32 s{sT1}, s{sMH}, 8")
    a(f"s_add_u32 s{sT1}, s{sK2}, s{sT1}")
    a(f"v_lshl_add_u32 v{vT2}, v{vL}, 2, s{sT1}")
    a(f"ds_write_b32 v{vT2}, v{ZR}")
    a.vm = []
    a.raw("    s_waitcnt vmcnt(0)")
    a(f"ds_write_b128 v{vT}, {vr(UR,4)} offset:512")
    a(f"ds_write_b128 v{vT}, {vr(UR+4,4)} offset:1536")
    vCA, vCB, vN, vG = 12, 13, 24, 25
    a(f"v_and_b32 v{vN}, 15, v{vL}")
    a(f"v_lshrrev_b32 v{vG}, 4, v{vL}")
    a(f"v_sub_u32 v{vT}, 2, v{vN}")
    a(f"v_and_b32 v{vT}, 3, v{vT}")
    a(f"v_lshlrev_b32 v{vT2}, 3, v{vG}")
    a(f"v_sub_u32 v{vT2}, v{vT2}, v{vN}")
    a(f"v_sub_u32 v{vT2}, v{vT2}, v{vT}")
    a(f"v_mul_u32_u24 v{vT}, {CS}, v{vT}")
    a(f"s_lshl_b32 s{sT0}, s{sMH}, 8")
    a(f"s_sub_u32 s{sT1}, s{sK3}, s{sT0}")
    a(f"s_add_u32 s{sT1}, s{sT1}, {2*(2050-1792-96)}")
    a.wait_lg()
    a(f"v_lshl_add_u32 v{vCA}, v{vT2}, 1, v{vT}")
    a(f"v_add_u32 v{vCA}, s{sT1}, v{vCA}")
    a(f"s_sub_u32 s{sT1}, s{sK2}, s{sT0}")
    a(f"s_add_u32 s{sT1}, s{sT1}, {2*(256-16-96)}")
    a(f"v_lshlrev_b32 v{vCB}, 5, v{vN}")
    a(f"v_lshl_add_u32 v{vCB}, v{vG}, 4, v{vCB}")
    a(f"v_add_u32 v{vCB}, s{sT1}, v{vCB}")
    a("s_barrier")
    stamp(a, 6)
    ACC = 32
    BUF = (64, 128)

    def reads(rl):
        b = BUF[rl & 1]
        out = []
        for k in range(8):
            out.append(f"ds_read_b128 {vr(b+32+4*k,4)}, v{vCB} offset:{512*k + 64*(3-rl)}")
            o = 512 * (7 - k) + 64 * (3 - rl)
            out.append(f"ds_read_b64 {vr(b+4*k,2)}, v{vCA} offset:{o}")
            out.append(f"ds_read_b64 {vr(b+4*k+2,2)}, v{vCA} offset:{o+8}")
        return out
    pairs = sorted([(mm, p) for mm in range(8) for p in range(8) if mm + p <= 7], key=lambda x: (max(x), x[0] + x[1]))
    for r in reads(0):
        a(r)
    started = set()
    for rl in range(4):
        b = BUF[rl & 1]
        nxt = reads(rl + 1) if rl < 3 else []
        for n, (mm, p) in enumerate(pairs):
            i = mm + p
            cin = vr(ACC + 4 * i, 4) if i in started else "0"
            started.add(i)
            a(f"v_mfma_f32_16x16x32_bf16 {vr(ACC+4*i,4)}, {vr(b+4*mm,4)}, {vr(b+32+4*p,4)}, {cin}")
            if nxt and n % 3 != 2:
                a(nxt.pop(0))
        assert not nxt
    stamp(a, 7)
    vRW, vRR = 14, 15
    a(f"s_lshl_b32 s{sT0}, s{sMH}, 12")
    a(f"s_add_u32 s{sT1}, s{sK3}, {RED}")
    a(f"s_add_u32 s{sT2}, s{sT1}, s{sT0}")
    a(f"v_lshl_add_u32 v{vRW}, v{vL}, 4, s{sT2}")
    a(f"s_xor_b32 s{sT0}, s{sT0}, 4096")
    a(f"s_add_u32 s{sT2}, s{sT1}, s{sT0}")
    a(f"v_lshl_add_u32 v{vRR}, v{vL}, 4, s{sT2}")
    vUS = 16
    a(f"s_lshl_b32 s{sT0}, s{sMH}, 11")
    a(f"s_add_u32 s{sT0}, s{sT0}, s{sK2}")
    a(f"v_lshlrev_b32 v{vT}, 5, v{vN}")
    a(f"v_lshl_add_u32 v{vT}, v{vG}, 3, v{vT}")
    a(f"v_add_u32 v{vUS}, s{sT0}, v{vT}")
    US = 64
    for m in range(4):
        a(f"ds_read_b64 {vr(US+2*m,2)}, v{vUS} offset:{512 + 512*m}")
    KEEP = 96
    a(f"s_cmp_eq_u32 s{sMH}, 1")
    a.settle()
    a("s_cbranch_scc1 A_red1")
    lg_save = list(a.lg)
    for mh in range(2):
        if mh == 1:
            a("s_branch A_red_done")
            a.label("A_red1")
            a.lg = list(lg_save)
        send = ACC + 16 * (1 - mh)
        keep = ACC + 16 * mh
        for m in range(4):
            a(f"ds_write_b128 v{vRW}, {vr(send+4*m,4)} offset:{1024*m}")
        for k in range(0, 16, 2):
            a(f"v_mov_b64 {vr(KEEP+k,2)}, {vr(keep+k,2)}")
        a.wait_lg()
    a.label("A_red_done")
    a("s_barrier")
    RR = 72
    for m in range(4):
        a(f"ds_read_b128 {vr(RR+4*m,4)}, v{vRR} offset:{1024*m}")
    UX = 112
    for m in range(4):
        for e in range(4):
            src = US + 2 * m + (e >> 1)
            if e & 1:
                a(f"v_and_b32 v{UX+4*m+e}, 0xffff0000, v{src}")
            else:
                a(f"v_lshlrev_b32 v{UX+4*m+e}, 16, v{src}")
            a(f"v_fma_f32 v{KEEP+4*m+e}, v{UX+4*m+e}, s{sDS}, v{KEEP+4*m+e}")
    vYW, vYR = 17, 18
    a(f"s_lshl_b32 s{sT0}, s{sMH}, 11")
    a(f"s_add_u32 s{sT0}, s{sT0}, s{sK3}")
    a(f"s_add_u32 s{sT0}, s{sT0}, {YRE}")
    a(f"v_add_u32 v{vYW}, s{sT0}, v{vT}")
    a(f"v_lshl_add_u32 v{vYR}, v{vL}, 4, s{sT0}")
    for m in range(4):
        a(f"v_pk_add_f32 {vr(KEEP+4*m,2)}, {vr(KEEP+4*m,2)}, {vr(RR+4*m,2)}")
        a(f"v_pk_add_f32 {vr(KEEP+4*m+2,2)}, {vr(KEEP+4*m+2,2)}, {vr(RR+4*m+2,2)}")
        a(f"v_cvt_pk_bf16_f32 v{US+2*m}, v{KEEP+4*m}, v{KEEP+4*m+1}")
        a(f"v_cvt_pk_bf16_f32 v{US+2*m+1}, v{KEEP+4*m+2}, v{KEEP+4*m+3}")
        a(f"ds_write_b64 v{vYW}, {vr(US+2*m,2)} offset:{512*m}")
    a.wait_lg()
    a(f"ds_read_b128 {vr(RR,4)}, v{vYR}")
    a(f"ds_read_b128 {vr(RR+4,4)}, v{vYR} offset:1024")
    a(f"v_add_u32 v{vUG}, {WS_YT}, v{vUG}")
    a(f"global_store_dwordx4 v{vUG}, {vr(RR,4)}, {sr(S_WS,2)} sc1")
    a(f"global_store_dwordx4 v{vUG}, {vr(RR+4,4)}, {sr(S_WS,2)} offset:1024 sc1")
    a(f"s_lshl_b32 s{sT0}, s{sCG}, 9")
    a(f"s_add_u32 s{sT0}, s{sT0}, {FL_FY}")
    a(f"s_lshl_b32 s{sT1}, s{sMH}, 8")
    a(f"s_lshl_b32 s{sT2}, s{sC}, 7")
    a(f"s_add_u32 s{sT1}, s{sT1}, s{sT2}")
    a(f"s_lshl_b32 s{sT2}, s{sJ}, 2")
    a(f"s_add_u32 s{sT1}, s{sT1}, s{sT2}")
    a(f"s_add_u32 s{sT1}, s{sT1}, s{sT0}")
    a(f"v_mov_b32 v{vFU}, s{sT1}")
    a(f"s_lshr_b32 s{sT1}, s{sJ}, 4")
    a(f"s_lshl_b32 s{sT1}, s{sT1}, 8")
    a(f"s_add_u32 s{sT1}, s{sT1}, s{sT0}")
    a(f"v_lshl_add_u32 v{vT2}, v{vL}, 2, s{sT1}")
    a(f"s_lshl_b32 s{sT0}, s{sCG}, 18")
    a(f"s_lshl_b32 s{sT1}, s{sW}, 16")
    a(f"s_add_u32 s{sT0}, s{sT0}, s{sT1}")
    a(f"s_lshl_b32 s{sT1}, s{sJ}, 7")
    a(f"s_add_u32 s{sT0}, s{sT0}, s{sT1}")
    a(f"s_add_u32 s{sT0}, s{sT0}, {WS_YT}")
    a(f"v_lshlrev_b32 v{vT}, 13, v{vM}")
    a(f"v_lshl_add_u32 v{vT}, v{vP}, 4, v{vT}")
    a(f"v_add_u32 v{vS0}, s{sT0}, v{vT}")
    a(f"v_add_u32 v{vS1}, 0x1000, v{vS0}")
    vO0, vO1 = 30, 31
    a(f"s_lshl_b32 s{sT0}, s{sJ}, 17")
    a(f"s_lshl_b32 s{sT1}, s{sW}, 15")
    a(f"s_add_u32 s{sT0}, s{sT0}, s{sT1}")
    a(f"s_lshl_b32 s{sT1}, s{sCG}, 7")
    a(f"s_add_u32 s{sT0}, s{sT0}, s{sT1}")
    a(f"v_lshlrev_b32 v{vT}, 11, v{vM}")
    a(f"v_lshl_add_u32 v{vT}, v{vP}, 4, v{vT}")
    a(f"v_add_u32 v{vO0}, s{sT0}, v{vT}")
    a(f"v_add_u32 v{vO1}, 0x4000, v{vO0}")
    a.wait_vm()
    store_flag(a, vFU, vTAG, S_WS)
    stamp(a, 8)
    poll_flags(a, "A_fy", vT2, vT3, S_WS, sTAG, sCNT)
    stamp(a, 9)
    a(f"global_load_dwordx4 {vr(32,4)}, v{vS0}, {sr(S_WS,2)} sc1")
    a(f"global_load_dwordx4 {vr(36,4)}, v{vS1}, {sr(S_WS,2)} sc1")
    transpose(a, 32, 36, 40, vTW, vTR0, vTR1, 48, CB0)
    a(f"global_store_dwordx4 v{vO0}, {vr(48,4)}, {sr(S_OUT,2)}")
    a(f"global_store_dwordx4 v{vO1}, {vr(52,4)}, {sr(S_OUT,2)}")
    if Ctx.stamps:
        a.wait_vm()
    stamp(a, 10)
    write_stamps(a, 11, 60)
    a("s_endpgm")
```

```python
from gen_common import *

WKR = 0
XR = 16384
MISC = 65536
KVA, ZA, ZERO, OT = MISC, MISC + 2560, MISC + 2688, MISC + 4096
XF = 128


def xslot(s):
    return XR + 16384 * s


def wv_base(c):
    return xslot(2) + 4096 * c if c < 4 else xslot(0) + 4096 * (c - 4)


def wq_base(c):
    return xslot(1) + 4096 * c if c < 4 else WKR + 4096 * (c - 4)


def wo_base(hp):
    return (xslot(2), xslot(0), xslot(1), WKR)[hp >> 2] + 4096 * (hp & 3)


sXC, sJ, sTB, sHP, sW, sT0, sT1, sT2, sTAG, sCNT, sE = 36, 37, 38, 39, 40, 41, 42, 43, 44, 45, 46
sW4K, sL2E, sT64, sCB = 47, 48, 49, 50
sMA, sMB = 52, 54


def softmax_stream(P, E1, E2, PK, t):
    mx, mn, s1, s2 = t, t + 1, t + 2, t + 3
    o = []
    o.append(f"v_max3_f32 v{mx}, v{P}, v{P+1}, v{P+2}")
    o.append(f"v_min3_f32 v{mn}, v{P}, v{P+1}, v{P+2}")
    for k in range(3, 15, 2):
        o.append(f"v_max3_f32 v{mx}, v{mx}, v{P+k}, v{P+k+1}")
        o.append(f"v_min3_f32 v{mn}, v{mn}, v{P+k}, v{P+k+1}")
    o.append(f"v_max_f32 v{mx}, v{mx}, v{P+15}")
    o.append(f"v_min_f32 v{mn}, v{mn}, v{P+15}")
    o.append(f"v_mul_f32 v{mx}, s{sL2E}, v{mx}")
    o.append(f"v_mul_f32 v{mn}, s{sL2E}, v{mn}")
    for k in range(16):
        o.append(f"v_fma_f32 v{E1+k}, v{P+k}, s{sL2E}, -v{mx}")
        o.append(f"v_fma_f32 v{E2+k}, -v{P+k}, s{sL2E}, v{mn}")
        o.append(f"v_exp_f32 v{E1+k}, v{E1+k}")
        o.append(f"v_exp_f32 v{E2+k}, v{E2+k}")
        if k == 1:
            o.append(f"v_add_f32 v{s1}, v{E1}, v{E1+1}")
            o.append(f"v_add_f32 v{s2}, v{E2}, v{E2+1}")
        elif k > 1:
            o.append(f"v_add_f32 v{s1}, v{s1}, v{E1+k}")
            o.append(f"v_add_f32 v{s2}, v{s2}, v{E2+k}")
    o.append(f"v_rcp_f32 v{s1}, v{s1}")
    o.append(f"v_rcp_f32 v{s2}, v{s2}")
    for k in range(0, 16, 2):
        for E, s, p in ((E1, s1, PK), (E2, s2, PK + 8)):
            o.append(f"v_mul_f32 v{E+k}, v{s}, v{E+k}")
            o.append(f"v_mul_f32 v{E+k+1}, v{s}, v{E+k+1}")
            o.append(f"v_cvt_pk_bf16_f32 v{p+k//2}, v{E+k}, v{E+k+1}")
    return o


def gemm_groups(base, vaddr, acc, WF, swap, blocks, nbuf=4):
    steps = [(c, s) for c in blocks for s in range(4)]

    def rd(n):
        c, s = steps[n]
        f = WF + 4 * (n % nbuf)
        return [f"ds_read_b64_tr_b16 {vr(f,2)}, v{vaddr} offset:{base(c)+1024*s}",
                f"ds_read_b64_tr_b16 {vr(f+2,2)}, v{vaddr} offset:{base(c)+1024*s+256}"]
    groups = [rd(0) + rd(1)]
    for n, (c, s) in enumerate(steps):
        f, x = vr(WF + 4 * (n % nbuf), 4), vr(XF + 16 * c + 4 * s, 4)
        cin = vr(acc, 16) if (c, s) != (0, 0) else "0"
        g = rd(n + 2) if n + 2 < len(steps) else []
        g.append(f"v_mfma_f32_32x32x16_bf16 {vr(acc,16)}, {x if swap else f}, {f if swap else x}, {cin}")
        groups.append(g)
    return groups


def gen_b(a):
    vL, vT, vT2, vT3, vTAG = 1, 2, 3, 4, 5
    vXG = 6
    vWK, vWX = 10, 11
    vXA = 12
    vTK, vTV = 16, 17
    vM1 = 20
    a("s_setprio 1")
    a(f"s_and_b32 s{sXC}, s2, 7")
    a(f"s_lshr_b32 s{sJ}, s2, 3")
    a(f"v_lshrrev_b32 v{vT}, 6, v0")
    a(f"v_and_b32 v{vL}, 63, v0")
    a(f"v_readfirstlane_b32 s{sW}, v{vT}")
    a(f"s_lshr_b32 s{sT0}, s{sXC}, 1")
    a(f"s_lshl_b32 s{sT0}, s{sT0}, 2")
    a(f"s_lshr_b32 s{sT1}, s{sJ}, 3")
    a(f"s_add_u32 s{sTB}, s{sT0}, s{sT1}")
    a(f"s_and_b32 s{sT0}, s{sXC}, 1")
    a(f"s_lshl_b32 s{sT0}, s{sT0}, 3")
    a(f"s_and_b32 s{sT1}, s{sJ}, 7")
    a(f"s_add_u32 s{sHP}, s{sT0}, s{sT1}")
    a(f"s_lshl_b32 s{sW4K}, s{sW}, 12")
    a(f"v_lshrrev_b32 v{vT}, 2, v{vL}")
    a(f"v_mul_u32_u24 v{vT}, 3072, v{vT}")
    a(f"v_and_b32 v{vT2}, 3, v{vL}")
    a(f"v_lshl_add_u32 v{vWX}, v{vT2}, 4, v{vT}")
    a(f"s_lshl_b32 s{sT0}, s{sHP}, 6")
    a(f"v_add_u32 v{vWX}, s{sT0}, v{vWX}")
    a(f"s_mul_i32 s{sT1}, s{sW}, {16*3072}")
    a(f"s_add_u32 s{sT1}, s{sT1}, 1024")
    a(f"v_add_u32 v{vWK}, s{sT1}, v{vWX}")
    a(f"v_lshrrev_b32 v{vT}, 3, v{vL}")
    a(f"v_lshrrev_b32 v{vT2}, 4, v{vL}")
    a(f"v_and_b32 v{vT3}, 7, v{vL}")
    a(f"v_xor_b32 v{vT2}, v{vT2}, v{vT3}")
    a(f"v_lshlrev_b32 v{vT2}, 4, v{vT2}")
    a(f"v_lshl_add_u32 v{vT}, v{vT}, 10, v{vT2}")
    a(f"s_lshl_b32 s{sT0}, s{sTB}, 17")
    a(f"s_lshl_b32 s{sT1}, s{sW}, 15")
    a(f"s_add_u32 s{sT0}, s{sT0}, s{sT1}")
    a(f"v_add_u32 v{vXG}, s{sT0}, v{vT}")
    a(f"v_xor_b32 v{vXG+1}, 64, v{vXG}")
    a(f"v_add_u32 v{vXG+1}, 0x2000, v{vXG+1}")
    a(f"v_add_u32 v{vXG+2}, 0x4000, v{vXG}")
    a(f"v_add_u32 v{vXG+3}, 0x4000, v{vXG+1}")
    a(f"s_lshl_b32 s{sT2}, s{sW}, 10")
    a.wait_lg()

    def dma_wk(c):
        a(f"s_add_u32 m0, s{sT2}, {WKR + 4096*(c%4)}")
        a(f"global_load_lds_dwordx4 v{vWK}, {sr(S_W,2)}")
        a(f"v_add_u32 v{vWK}, {64*3072}, v{vWK}")

    def dma_x(c):
        t = None
        for q in range(4):
            a(f"s_add_u32 m0, s{sW4K}, {xslot(c%3) + 1024*q - 128*c}")
            t = a(f"global_load_lds_dwordx4 v{vXG+q}, {sr(S_X,2)} offset:{128*c}")
        return t

    def dma_wblock(col, blk0, ldsbase, vtmp):
        a(f"s_mul_i32 s{sT0}, s{sW}, {64*3072}")
        a(f"s_add_u32 s{sT0}, s{sT0}, {blk0*64*3072 + col}")
        a(f"v_add_u32 v{vtmp}, s{sT0}, v{vWX}")
        t = None
        for m in range(4):
            a(f"s_add_u32 m0, s{sW4K}, {ldsbase + 1024*m}")
            t = a(f"global_load_lds_dwordx4 v{vtmp}, {sr(S_W,2)}")
            if m < 3:
                a(f"v_add_u32 v{vtmp}, {16*3072}, v{vtmp}")
        return t
    tok = {}
    for c in range(3):
        dma_wk(c)
        tok[c] = dma_x(c)
        if c == 0:
            a(f"s_mov_b32 s{sT0}, {FL_EB}")
            a(f"s_load_dword s{sE}, {sr(S_WS,2)}, s{sT0}")
    a(f"s_lshl_b32 s{sT0}, s{sHP}, 10")
    a(f"s_lshl_b32 s{sT1}, s{sW}, 8")
    a(f"s_add_u32 s{sT0}, s{sT0}, s{sT1}")
    a(f"v_lshl_add_u32 v{vT}, v{vL}, 2, s{sT0}")
    a(f"s_add_u32 m0, s{sT1}, {MISC}")
    a(f"global_load_lds_dword v{vT}, {sr(S_WPHI,2)}")
    vKVS, vOS = 18, 19
    a(f"s_lshl_b32 s{sT0}, s{sHP}, 4")
    a(f"s_add_u32 s{sT0}, s{sT0}, s{sTB}")
    a(f"s_mul_i32 s{sT0}, s{sT0}, {KVP_STRIDE}")
    a(f"s_add_u32 s{sT0}, s{sT0}, {WS_KVP}")
    a(f"v_mul_u32_u24 v{vKVS}, 12, v0")
    a(f"v_add_u32 v{vKVS}, s{sT0}, v{vKVS}")
    a(f"s_lshl_b32 s{sT0}, s{sTB}, 17")
    a(f"s_lshl_b32 s{sT1}, s{sW}, 15")
    a(f"s_add_u32 s{sT0}, s{sT0}, s{sT1}")
    a(f"s_lshl_b32 s{sT1}, s{sHP}, 11")
    a(f"s_add_u32 s{sT0}, s{sT0}, s{sT1}")
    a(f"s_add_u32 s{sT0}, s{sT0}, {WS_O}")
    a(f"v_lshl_add_u32 v{vOS}, v{vL}, 4, s{sT0}")
    for k in range(4):
        a(f"v_mov_b32 v{vM1+k}, -1")
    a(f"global_store_dwordx3 v{vKVS}, {vr(vM1,3)}, {sr(S_WS,2)} sc1")
    a(f"global_store_dwordx4 v{vOS}, {vr(vM1,4)}, {sr(S_WS,2)} sc1")
    a(f"global_store_dwordx4 v{vOS}, {vr(vM1,4)}, {sr(S_WS,2)} offset:1024 sc1")
    vI, vG = 24, 25
    a(f"v_and_b32 v{vI}, 31, v{vL}")
    a(f"v_lshrrev_b32 v{vG}, 5, v{vL}")
    a(f"v_bfe_u32 v{vT}, v{vL}, 1, 3")
    a(f"v_xor_b32 v{vT}, v{vT}, v{vG}")
    a(f"v_lshlrev_b32 v{vT}, 4, v{vT}")
    a(f"v_lshl_add_u32 v{vT}, v{vI}, 7, v{vT}")
    a(f"v_add_u32 v{vXA}, s{sW4K}, v{vT}")
    for s in range(1, 4):
        a(f"v_xor_b32 v{vXA+s}, {32*s}, v{vXA}")
    vRp, vCp, vCG = 26, 27, 28
    a(f"v_bfe_u32 v{vRp}, v{vL}, 2, 2")
    a(f"v_and_b32 v{vCp}, 3, v{vL}")
    a(f"v_bfe_u32 v{vCG}, v{vL}, 4, 1")
    a(f"v_lshl_add_u32 v{vT}, v{vG}, 3, v{vRp}")
    a(f"v_lshlrev_b32 v{vT}, 6, v{vT}")
    a(f"v_lshlrev_b32 v{vT2}, 3, v{vCp}")
    a(f"v_lshl_add_u32 v{vT2}, v{vCG}, 5, v{vT2}")
    a(f"v_add_u32 v{vTV}, v{vT}, v{vT2}")
    a(f"v_and_b32 v{vT2}, 1, v{vCp}")
    a(f"v_lshl_add_u32 v{vT}, v{vT2}, 5, v{vT}")
    a(f"v_lshl_add_u32 v{vT}, v{vCG}, 4, v{vT}")
    a(f"v_lshrrev_b32 v{vT2}, 1, v{vCp}")
    a(f"v_lshl_add_u32 v{vTK}, v{vT2}, 3, v{vT}")
    vPH = 29
    a(f"v_lshlrev_b32 v{vPH}, 9, v{vG}")
    a(f"v_lshl_add_u32 v{vPH}, v{vRp}, 5, v{vPH}")
    a(f"v_lshl_add_u32 v{vPH}, v{vCG}, 4, v{vPH}")
    a(f"v_lshl_add_u32 v{vPH}, v{vT2}, 3, v{vPH}")
    a(f"v_add_u32 v{vPH}, {MISC}, v{vPH}")
    a(f"v_bfe_u32 v{vT}, v{vL}, 2, 1")
    a(f"v_cmp_eq_u32 {sr(sMA,2)}, v{vT}, v{vG}")
    a(f"v_cmp_eq_u32 {sr(sMB,2)}, 1, v{vCG}")
    a(f"s_mov_b32 s{sL2E}, 0x3fb8aa3b")
    SEL = 112
    a(f"v_bfe_u32 v{vT2}, v{vL}, 3, 1")
    a(f"v_lshl_add_u32 v{vT2}, v{vT2}, 2, v{vCp}")
    a(f"v_and_b32 v{vT3}, 1, v{vT2}")
    a(f"v_lshlrev_b32 v{vT3}, 4, v{vT3}")
    a(f"v_mov_b32 v30, 0x3f80")
    a(f"v_lshlrev_b32 v{vT3}, v{vT3}, v30")
    a(f"v_cmp_eq_u32 vcc, v{vCG}, v{vG}")
    a(f"v_cndmask_b32 v{vT3}, 0, v{vT3}, vcc")
    a(f"v_lshrrev_b32 v{vT2}, 1, v{vT2}")
    a(f"v_lshl_add_u32 v{vT2}, v{vT}, 2, v{vT2}")
    for k in range(8):
        a(f"v_cmp_eq_u32 vcc, {k}, v{vT2}")
        a(f"v_cndmask_b32 v{SEL+k}, 0, v{vT3}, vcc")
    a.wait_lg()
    a(f"s_mul_i32 s{sTAG}, s{sE}, {TAG_MUL}")
    a(f"s_add_u32 s{sTAG}, s{sTAG}, {TAG_ADD}")
    a(f"v_mov_b32 v{vTAG}, s{sTAG}")
    a(f"s_mov_b32 s{sCNT}, 0")
    stamp(a, 1)

    AK, AV, WF, WP = 32, 48, 64, 120
    for c in range(8):
        a.wait_vm(tok[c])
        a("s_barrier")
        if c + 3 < 8:
            dma_wk(c + 3)
        t = None
        for s in range(4):
            t = a(f"ds_read_b128 {vr(XF+16*c+4*s,4)}, v{vXA+s} offset:{xslot(c%3)}")
        for s in range(4):
            a(f"ds_read_b64_tr_b16 {vr(WF+4*s,2)}, v{vTK} offset:{WKR+4096*(c%4)+1024*s}")
            a(f"ds_read_b64_tr_b16 {vr(WF+4*s+2,2)}, v{vTK} offset:{WKR+4096*(c%4)+1024*s+256}")
        a.wait_lg(t)
        if c + 3 < 8:
            tok[c + 3] = dma_x(c + 3)
        elif c == 5:
            tok["v0"] = dma_wblock(2048, 0, xslot(2), vT)
        elif c == 6:
            tok["v1"] = dma_wblock(2048, 4, xslot(0), vT)
        else:
            tok["q0"] = dma_wblock(0, 0, xslot(1), vT)
        if c == 3:
            a.comment("hand-off buffers cleared: publish")
            a(f"s_lshl_b32 s{sT0}, s{sTB}, 4")
            a(f"s_add_u32 s{sT0}, s{sT0}, s{sHP}")
            a(f"s_lshl_b32 s{sT0}, s{sT0}, 7")
            a(f"s_add_u32 s{sT0}, s{sT0}, {FL_FC}")
            a(f"v_mov_b32 v{vT}, s{sT0}")
            store_flag(a, vT, vTAG, S_WS)
        for s in range(4):
            a(f"v_mfma_f32_32x32x16_bf16 {vr(AK,16)}, {vr(WF+4*s,4)}, {vr(XF+16*c+4*s,4)}, {vr(AK,16) if c or s else 0}")
        if c == 4:
            for s in range(2):
                a(f"ds_read_b64_tr_b16 {vr(WP+4*s,2)}, v{vPH} offset:{256*s}")
                a(f"ds_read_b64_tr_b16 {vr(WP+4*s+2,2)}, v{vPH} offset:{256*s+128}")
            for k in range(8):
                a(f"v_cndmask_b32 v{WP+k}, 0, v{WP+k}, {sr(sMA,2)}")
    stamp(a, 2)
    KB, P, E1, E2, PK, TS = 80, 32, 80, 96, 32, 20
    a.wait_vm(tok["v0"])
    a("s_barrier")
    tok["q1"] = dma_wblock(0, 4, WKR, vT)
    g1 = gemm_groups(wv_base, vTV, AV, WF, True, range(4))
    for t in g1[0] + g1[1] + g1[2]:
        a(t)
    for k in range(8):
        a(f"v_cvt_pk_bf16_f32 v{KB+k}, v{AK+2*k}, v{AK+2*k+1}")
    for t in g1[3]:
        a(t)
    a(f"v_mfma_f32_32x32x16_bf16 {vr(P,16)}, {vr(WP,4)}, {vr(KB,4)}, 0")
    a(f"v_mfma_f32_32x32x16_bf16 {vr(P,16)}, {vr(WP+4,4)}, {vr(KB+4,4)}, {vr(P,16)}")
    for t in g1[4] + g1[5] + g1[6]:
        a(t)
    sm = softmax_stream(P, E1, E2, PK, TS)
    sm = interleave(a, g1[7:], sm, 6)
    a.wait_vm(tok["v1"])
    a("s_barrier")
    g2 = gemm_groups(wv_base, vTV, AV, WF, True, range(4, 8))
    sm = interleave(a, g2, sm, 6)
    for t in sm:
        a(t)
    stamp(a, 3)
    DP, DN, VB, APK, ANK = 80, 96, 64, 72, 32
    a(f"v_mfma_f32_32x32x16_bf16 {vr(DP,16)}, {vr(PK,4)}, {vr(SEL,4)}, 0")
    a(f"v_mfma_f32_32x32x16_bf16 {vr(DN,16)}, {vr(PK+8,4)}, {vr(SEL,4)}, 0")
    a(f"v_mfma_f32_32x32x16_bf16 {vr(DP,16)}, {vr(PK+4,4)}, {vr(SEL+4,4)}, {vr(DP,16)}")
    a(f"v_mfma_f32_32x32x16_bf16 {vr(DN,16)}, {vr(PK+12,4)}, {vr(SEL+4,4)}, {vr(DN,16)}")
    vRW, vRR, vZW, vZR = 20, 21, 22, 23
    a(f"s_add_u32 s{sT0}, s{sW4K}, {MISC}")
    a(f"v_lshl_add_u32 v{vRW}, v{vL}, 4, s{sT0}")
    a(f"s_lshl_b32 s{sT1}, s{sW}, 10")
    a(f"s_add_u32 s{sT2}, s{sT1}, {MISC}")
    a(f"v_lshl_add_u32 v{vRR}, v{vL}, 4, s{sT2}")
    a(f"s_add_u32 s{sT0}, s{sT0}, s{sT1}")
    a(f"v_lshl_add_u32 v{vZW}, v{vL}, 3, s{sT0}")
    a(f"v_lshlrev_b32 v{vZR}, 2, v{vG}")
    a(f"v_lshl_add_u32 v{vZR}, v{vI}, 3, v{vZR}")
    a(f"v_add_u32 v{vZR}, {MISC}, v{vZR}")
    for k in range(8):
        a(f"v_cvt_pk_bf16_f32 v{VB+k}, v{AV+2*k}, v{AV+2*k+1}")
    for k in range(8):
        a(f"v_cvt_pk_bf16_f32 v{APK+k}, v{DP+2*k}, v{DP+2*k+1}")
    KP, KN = 48, 112
    a(f"v_mfma_f32_32x32x16_bf16 {vr(KP,16)}, {vr(APK,4)}, {vr(VB,4)}, 0")
    for k in range(8):
        a(f"v_cvt_pk_bf16_f32 v{ANK+k}, v{DN+2*k}, v{DN+2*k+1}")
    a(f"v_mfma_f32_32x32x16_bf16 {vr(KP,16)}, {vr(APK+4,4)}, {vr(VB+4,4)}, {vr(KP,16)}")
    ZS = 30
    a(f"v_add_f32 v{ZS+1}, v{DN}, v{DN+1}")
    for k in range(2, 16):
        a(f"v_add_f32 v{ZS+1}, v{ZS+1}, v{DN+k}")
    KN = DN
    a(f"v_mfma_f32_32x32x16_bf16 {vr(KN,16)}, {vr(ANK,4)}, {vr(VB,4)}, 0")
    a(f"v_mfma_f32_32x32x16_bf16 {vr(KN,16)}, {vr(ANK+4,4)}, {vr(VB+4,4)}, {vr(KN,16)}")
    a(f"v_add_f32 v{ZS}, v{DP}, v{DP+1}")
    for k in range(2, 16):
        a(f"v_add_f32 v{ZS}, v{ZS}, v{DP+k}")
    SV = 32
    for k in range(8):
        a(f"v_cndmask_b32 v{SV+k}, v{KP+k}, v{KP+8+k}, {sr(sMB,2)}")
    for k in range(8):
        a(f"v_cndmask_b32 v{SV+8+k}, v{KN+k}, v{KN+8+k}, {sr(sMB,2)}")
    for q in range(4):
        a(f"ds_write_b128 v{vRW}, {vr(SV+4*q,4)} offset:{1024*q}")
    a(f"ds_write_b64 v{vZW}, {vr(ZS,2)}")
    OQ = 48
    a(f"s_cmp_eq_u32 s{sW}, 1")
    a(f"s_cselect_b64 vcc, -1, 0")
    for k in range(4):
        a(f"v_cndmask_b32 v{OQ+k}, v{SV+k}, v{SV+4+k}, vcc")
    a(f"s_cmp_eq_u32 s{sW}, 3")
    a(f"s_cselect_b64 vcc, -1, 0")
    for k in range(4):
        a(f"v_cndmask_b32 v{OQ+4+k}, v{SV+8+k}, v{SV+12+k}, vcc")
    a(f"s_cmp_ge_u32 s{sW}, 2")
    a(f"s_cselect_b64 vcc, -1, 0")
    for k in range(4):
        a(f"v_cndmask_b32 v{OQ+k}, v{OQ+k}, v{OQ+4+k}, vcc")
    a.wait_vm(tok["q1"])
    a.wait_lg()
    a("s_barrier")
    RQ, RZ = 80, 96
    for w in range(4):
        a(f"ds_read_b128 {vr(RQ+4*w,4)}, v{vRR} offset:{4096*w}")
    for w in range(4):
        for h in range(2):
            a(f"ds_read_b32 v{RZ+2*w+h}, v{vZR} offset:{5120*w+256*h}")
    for w in range(4):
        a(f"s_cmp_eq_u32 s{sW}, {w}")
        a(f"s_cselect_b64 vcc, 0, -1")
        for k in range(4):
            a(f"v_cndmask_b32 v{RQ+4*w+k}, 0, v{RQ+4*w+k}, vcc")
        a(f"v_pk_add_f32 {vr(OQ,2)}, {vr(OQ,2)}, {vr(RQ+4*w,2)}")
        a(f"v_pk_add_f32 {vr(OQ+2,2)}, {vr(OQ+2,2)}, {vr(RQ+4*w+2,2)}")
    PB = 52
    a(f"v_cvt_pk_bf16_f32 v{PB}, v{OQ}, v{OQ+1}")
    a(f"v_cvt_pk_bf16_f32 v{PB+1}, v{OQ+2}, v{OQ+3}")
    for k in (0, 2):
        a(f"v_pk_add_f32 {vr(RZ+2*k,2)}, {vr(RZ+2*k,2)}, {vr(RZ+2*k+2,2)}")
    a(f"v_pk_add_f32 {vr(RZ,2)}, {vr(RZ,2)}, {vr(RZ+4,2)}")
    a(f"v_add_f32 v{PB+2}, v{RZ}, v{RZ+1}")
    a(f"global_store_dwordx3 v{vKVS}, {vr(PB,3)}, {sr(S_WS,2)} sc1")
    stamp(a, 4)

    a(f"s_lshl_b32 s{sT64}, s{sXC}, 2")
    a(f"s_lshr_b32 s{sT0}, s{sJ}, 3")
    a(f"s_add_u32 s{sT64}, s{sT64}, s{sT0}")
    a(f"s_and_b32 s{sCB}, s{sJ}, 7")
    vWO = 6
    a(f"v_lshrrev_b32 v{vT}, 3, v{vL}")
    a(f"v_bfe_u32 v{vT2}, v{vL}, 4, 1")
    a(f"v_lshlrev_b32 v{vT2}, 1, v{vT2}")
    a(f"v_and_b32 v{vT3}, 7, v{vL}")
    a(f"v_xor_b32 v{vT2}, v{vT2}, v{vT3}")
    a(f"v_lshlrev_b32 v{vT2}, 4, v{vT2}")
    a(f"v_lshl_add_u32 v{vT}, v{vT}, 10, v{vT2}")
    a(f"s_lshl_b32 s{sT0}, s{sCB}, 7")
    a(f"s_lshl_b32 s{sT1}, s{sW}, 15")
    a(f"s_add_u32 s{sT0}, s{sT0}, s{sT1}")
    a(f"v_add_u32 v{vWO}, s{sT0}, v{vT}")
    a(f"v_xor_b32 v{vWO+1}, 64, v{vWO}")
    a(f"v_add_u32 v{vWO+1}, 0x2000, v{vWO+1}")

    def dma_wo(grp):
        t = None
        for m in range(4):
            a(f"s_add_u32 m0, s{sW4K}, {wo_base(4*grp) + 1024*m}")
            t = a(f"global_load_lds_dwordx4 v{vWO+(m&1)}, {sr(S_WO,2)}")
            a(f"v_add_u32 v{vWO+(m&1)}, {0x4000 if m < 2 else 0x20000-0x4000}, v{vWO+(m&1)}")
        return t
    vFC = 8
    a(f"v_and_b32 v{vT}, 15, v{vL}")
    a(f"v_lshlrev_b32 v{vT2}, 4, v{vT}")
    a(f"v_add_u32 v{vT2}, s{sHP}, v{vT2}")
    a(f"s_lshr_b32 s{sT0}, s{sT64}, 1")
    a(f"s_lshl_b32 s{sT0}, s{sT0}, 4")
    a(f"v_add_u32 v{vT}, s{sT0}, v{vT}")
    a(f"v_cndmask_b32 v{vT}, v{vT2}, v{vT}, {sr(sMB,2)}")
    a(f"v_lshlrev_b32 v{vT}, 7, v{vT}")
    a(f"v_add_u32 v{vFC}, {FL_FC}, v{vT}")
    vFV = 9
    a(f"global_load_dword v{vFV}, v{vFC}, {sr(S_WS,2)} sc1")
    dma_wo(0)
    dma_wo(1)
    AQ = 32
    for g in gemm_groups(wq_base, vTK, AQ, WF, False, range(8)):
        for t in g:
            a(t)
    vKL = 10
    a(f"s_mul_i32 s{sT0}, s{sHP}, {16*KVP_STRIDE}")
    a(f"s_add_u32 s{sT0}, s{sT0}, {WS_KVP + KVP_STRIDE}")
    a(f"v_mul_u32_u24 v{vT}, 12, v0")
    KLB = 192
    a(f"v_add_u32 v{KLB}, s{sT0}, v{vT}")
    for k in range(1, 6):
        a(f"v_add_u32 v{KLB+k}, {3*KVP_STRIDE*k}, v{KLB}")
    a(f"v_cmp_ne_u32 vcc, s{sTAG}, v{vFV}")
    a("s_cbranch_vccnz B_fc_r")
    a.raw("B_fc_k:")
    Retry.stubs.append("\n".join([
        "B_fc_r:",
        f"    global_load_dword v{vFV}, v{vFC}, {sr(S_WS,2)} sc1",
        f"    s_add_u32 s{sCNT}, s{sCNT}, 1",
        f"    s_cmp_gt_u32 s{sCNT}, {SPIN_MAX}",
        "    s_waitcnt vmcnt(0)",
        "    s_cbranch_scc1 B_fc_k",
        f"    v_cmp_ne_u32 vcc, s{sTAG}, v{vFV}",
        "    s_nop 1",
        "    s_cbranch_vccnz B_fc_r",
        "    s_branch B_fc_k"]))
    KL = 128
    kloads = [f"global_load_dwordx3 {vr(KL+4*p,3)}, v{KLB+p//3}, {sr(S_WS,2)} offset:{(p%3-1)*KVP_STRIDE} sc1" for p in range(16)]
    for t in kloads:
        a(t)
    a("s_barrier")
    stamp(a, 5)
    for k in range(8):
        a(f"v_cvt_pk_bf16_f32 v{64+k}, v{AQ+2*k}, v{AQ+2*k+1}")
    a(f"v_mfma_f32_32x32x16_bf16 {vr(P,16)}, {vr(WP,4)}, {vr(64,4)}, 0")
    a(f"v_mfma_f32_32x32x16_bf16 {vr(P,16)}, {vr(WP+4,4)}, {vr(68,4)}, {vr(P,16)}")
    vKW, vZWr, vKR, vZRd = 12, 13, 14, 15
    a(f"v_mul_u32_u24 v{vKW}, 80, v{vI}")
    a(f"v_lshl_add_u32 v{vKW}, v{vG}, 4, v{vKW}")
    a(f"s_lshr_b32 s{sT0}, s{sW}, 1")
    a(f"s_lshl_b32 s{sT0}, s{sT0}, 5")
    a(f"s_and_b32 s{sT1}, s{sW}, 1")
    a(f"s_lshl_b32 s{sT1}, s{sT1}, 3")
    a(f"s_add_u32 s{sT0}, s{sT0}, s{sT1}")
    a(f"s_add_u32 s{sT0}, s{sT0}, {KVA}")
    a(f"v_add_u32 v{vKW}, s{sT0}, v{vKW}")
    a(f"v_bfe_u32 v{vT}, v{vL}, 2, 1")
    a(f"v_bfe_u32 v{vT2}, v{vL}, 3, 1")
    a(f"v_lshl_add_u32 v{vT2}, v{vT}, 1, v{vT2}")
    a(f"v_lshl_add_u32 v{vT2}, v{vT2}, 2, v{vCp}")
    a(f"v_lshl_add_u32 v{vT2}, v{vG}, 4, v{vT2}")
    a(f"v_lshl_add_u32 v{vT2}, v{vCG}, 5, v{vT2}")
    a(f"v_lshlrev_b32 v{vT2}, 1, v{vT2}")
    a(f"v_add_u32 v{vZWr}, {ZA}, v{vT2}")
    a(f"v_bfe_u32 v{vT}, v{vL}, 3, 2")
    a(f"v_lshl_add_u32 v{vT}, v{vT}, 2, v{vCp}")
    a(f"v_lshl_add_u32 v{vT}, v{vG}, 4, v{vT}")
    a(f"v_mul_u32_u24 v{vT}, 80, v{vT}")
    a(f"v_add_u32 v{vT}, {KVA}, v{vT}")
    a(f"v_mov_b32 v{vT2}, {ZERO}")
    a(f"v_cndmask_b32 v{vKR}, v{vT2}, v{vT}, {sr(sMA,2)}")
    a(f"v_lshlrev_b32 v{vT}, 6, v{vG}")
    a(f"v_add_u32 v{vT}, {ZA}, v{vT}")
    a(f"v_cndmask_b32 v{vZRd}, v{vT2}, v{vT}, {sr(sMA,2)}")
    a(f"v_and_b32 v{vT}, 15, v{vL}")
    a(f"v_lshl_add_u32 v{vT}, v{vT}, 2, v{vT2}")
    a(f"v_mov_b32 v{vT3}, 0")
    a(f"ds_write_b32 v{vT}, v{vT3}")
    PQ = 48
    for t in softmax_stream(P, E1, E2, PQ, TS):
        a(t)
    stamp(a, 6)
    S4, UT = 32, 40
    for p in range(16):
        r = KL + 4 * p
        checked(a, "B_kv", p, kloads, r, 3, vT, sCNT)
        d = S4 if p == 0 else UT
        a(f"v_lshlrev_b32 v{d}, 16, v{r}")
        a(f"v_and_b32 v{d+1}, 0xffff0000, v{r}")
        a(f"v_lshlrev_b32 v{d+2}, 16, v{r+1}")
        a(f"v_and_b32 v{d+3}, 0xffff0000, v{r+1}")
        if p == 0:
            a(f"v_mov_b32 v{S4+4}, v{r+2}")
        else:
            a(f"v_pk_add_f32 {vr(S4,2)}, {vr(S4,2)}, {vr(UT,2)}")
            a(f"v_pk_add_f32 {vr(S4+2,2)}, {vr(S4+2,2)}, {vr(UT+2,2)}")
            a(f"v_add_f32 v{S4+4}, v{S4+4}, v{r+2}")
    a(f"v_cvt_pk_bf16_f32 v{UT}, v{S4}, v{S4+1}")
    a(f"v_cvt_pk_bf16_f32 v{UT+1}, v{S4+2}, v{S4+3}")
    a(f"v_cvt_pk_bf16_f32 v{UT+2}, v{S4+4}, v{S4+4}")
    a(f"ds_write_b64 v{vKW}, {vr(UT,2)}")
    a(f"ds_write_b16 v{vZWr}, v{UT+2}")
    a.wait_lg()
    a("s_barrier")
    stamp(a, 7)
    FK, FZ, NUM, DEN = 64, 80, 96, 32
    for s in range(4):
        a(f"ds_read_b128 {vr(FZ+4*s,4)}, v{vZRd} offset:{16*s}")
        a(f"ds_read_b128 {vr(FK+4*s,4)}, v{vKR} offset:{16*s}")
    for s in range(4):
        a(f"v_mfma_f32_32x32x16_bf16 {vr(DEN,16)}, {vr(FZ+4*s,4)}, {vr(PQ+4*s,4)}, {vr(DEN,16) if s else 0}")
    for s in range(4):
        a(f"v_mfma_f32_32x32x16_bf16 {vr(NUM,16)}, {vr(FK+4*s,4)}, {vr(PQ+4*s,4)}, {vr(NUM,16) if s else 0}")
    vTO = 16
    vG4 = 20
    a(f"v_lshrrev_b32 v{vG4}, 4, v{vL}")
    a(f"v_lshl_add_u32 v{vT}, v{vG4}, 3, v{vRp}")
    a(f"v_lshlrev_b32 v{vT}, 7, v{vT}")
    a(f"v_lshl_add_u32 v{vT}, v{vCp}, 3, v{vT}")
    a(f"v_lshrrev_b32 v{vT2}, 1, v{vRp}")
    a(f"v_lshl_add_u32 v{vT2}, v{vCG}, 1, v{vT2}")
    a(f"v_mov_b32 v{vT3}, v{vOS}")
    a(f"v_lshl_add_u32 v{vTO}, v{vT2}, 5, v{vT}")
    a(f"v_add_f32 v{DEN}, 0x358637bd, v{DEN}")
    a(f"v_rcp_f32 v{DEN}, v{DEN}")
    for ct in range(1, 4):
        a(f"v_xor_b32 v{vTO+ct}, {32*ct}, v{vTO}")
    OB = 64
    for k in range(8):
        a(f"v_mul_f32 v{NUM+2*k}, v{DEN}, v{NUM+2*k}")
        a(f"v_mul_f32 v{NUM+2*k+1}, v{DEN}, v{NUM+2*k+1}")
        a(f"v_cvt_pk_bf16_f32 v{OB+k}, v{NUM+2*k}, v{NUM+2*k+1}")
        if k == 3:
            a(f"global_store_dwordx4 v{vT3}, {vr(OB,4)}, {sr(S_WS,2)} sc1")
    tst = a(f"global_store_dwordx4 v{vT3}, {vr(OB+4,4)}, {sr(S_WS,2)} offset:1024 sc1")
    stamp(a, 8)
    dma_wo(2)
    dma_wo(3)
    vOL = 24
    a(f"s_lshl_b32 s{sT0}, s{sT64}, 16")
    a(f"s_lshr_b32 s{sT1}, s{sW}, 1")
    a(f"s_lshl_b32 s{sT1}, s{sT1}, 15")
    a(f"s_add_u32 s{sT0}, s{sT0}, s{sT1}")
    a(f"s_and_b32 s{sT1}, s{sW}, 1")
    a(f"s_lshl_b32 s{sT1}, s{sT1}, 8")
    a(f"s_add_u32 s{sT0}, s{sT0}, s{sT1}")
    a(f"s_add_u32 s{sT0}, s{sT0}, {WS_O + 4096}")
    vT16 = 21
    a(f"v_and_b32 v{vT16}, 15, v{vL}")
    a(f"v_lshlrev_b32 v{vT}, 4, v{vT16}")
    a(f"v_lshl_add_u32 v{vT}, v{vCG}, 10, v{vT}")
    a(f"v_lshl_add_u32 v{vT}, v{vG}, 9, v{vT}")
    a(f"v_add_u32 v{vOL}, s{sT0}, v{vT}")
    for k in range(1, 4):
        a(f"v_add_u32 v{vOL+k}, {8192*k}, v{vOL}")
    vOW, vOR, vOG = 22, 23, 28
    a(f"s_mul_i32 s{sT0}, s{sW}, 2304")
    a(f"s_add_u32 s{sT0}, s{sT0}, {OT}")
    a(f"v_mul_u32_u24 v{vOW}, 144, v{vT16}")
    a(f"v_lshl_add_u32 v{vOW}, v{vG4}, 3, v{vOW}")
    a(f"v_add_u32 v{vOW}, s{sT0}, v{vOW}")
    a(f"v_lshrrev_b32 v{vT}, 3, v{vL}")
    a(f"v_and_b32 v{vT2}, 7, v{vL}")
    a(f"v_mul_u32_u24 v{vOR}, 144, v{vT}")
    a(f"v_lshl_add_u32 v{vOR}, v{vT2}, 4, v{vOR}")
    a(f"v_add_u32 v{vOR}, s{sT0}, v{vOR}")
    a(f"s_lshl_b32 s{sT0}, s{sT64}, 17")
    a(f"s_lshl_b32 s{sT1}, s{sW}, 15")
    a(f"s_add_u32 s{sT0}, s{sT0}, s{sT1}")
    a(f"s_lshl_b32 s{sT1}, s{sCB}, 7")
    a(f"s_add_u32 s{sT0}, s{sT0}, s{sT1}")
    a(f"s_add_u32 s{sT0}, s{sT0}, 1024")
    a(f"v_lshlrev_b32 v{vT}, 11, v{vT}")
    a(f"v_lshl_add_u32 v{vT}, v{vT2}, 4, v{vT}")
    a(f"v_add_u32 v{vOG}, s{sT0}, v{vT}")
    a(f"v_add_u32 v{vOG+1}, 0x4000, v{vOG}")
    a.wait_vm()
    a("s_barrier")
    OF = 192
    oloads = [f"global_load_dwordx4 {vr(OF+4*h,4)}, v{vOL+h//4}, {sr(S_WS,2)} offset:{(h%4-2)*2048} sc1" for h in range(16)]
    for t in oloads:
        a(t)
    stamp(a, 9)
    AO, WOF = 32, 64

    def wrd(h):
        o = []
        for ct in range(4):
            f = WOF + 16 * (h & 1) + 4 * ct
            o.append(f"ds_read_b64_tr_b16 {vr(f,2)}, v{vTO+ct} offset:{wo_base(h)}")
            o.append(f"ds_read_b64_tr_b16 {vr(f+2,2)}, v{vTO+ct} offset:{wo_base(h)+512}")
        return o
    for t in wrd(0):
        a(t)
    for h in range(16):
        checked(a, "B_o", h, oloads, OF + 4 * h, 4, vT, sCNT)
        nxt = wrd(h + 1) if h < 15 else []
        for ct in range(4):
            a(f"v_mfma_f32_16x16x32_bf16 {vr(AO+4*ct,4)}, {vr(WOF+16*(h&1)+4*ct,4)}, {vr(OF+4*h,4)}, {vr(AO+4*ct,4) if h else 0}")
            for t in nxt[2 * ct:2 * ct + 2]:
                a(t)
    a(f"v_mov_b32 v{vT}, {FL_EB}")
    a(f"s_or_b32 s{sT0}, s2, s{sW}")
    a(f"s_cmp_lg_u32 s{sT0}, 0")
    a("s_cbranch_scc1 B_noep")
    a.raw("    s_mov_b64 exec, 1")
    a.raw(f"    global_store_dword v{vT}, v{vTAG}, {sr(S_WS,2)} sc1")
    a.raw("    s_mov_b64 exec, -1")
    a.raw("B_noep:")
    for ct in range(4):
        a(f"v_cvt_pk_bf16_f32 v{48+2*ct}, v{AO+4*ct}, v{AO+4*ct+1}")
        a(f"v_cvt_pk_bf16_f32 v{49+2*ct}, v{AO+4*ct+2}, v{AO+4*ct+3}")
        a(f"ds_write_b64 v{vOW}, {vr(48+2*ct,2)} offset:{32*ct}")
    a.wait_lg()
    a(f"ds_read_b128 {vr(56,4)}, v{vOR}")
    a(f"ds_read_b128 {vr(60,4)}, v{vOR} offset:{8*144}")
    a(f"global_store_dwordx4 v{vOG}, {vr(56,4)}, {sr(S_OUT,2)}")
    a(f"global_store_dwordx4 v{vOG+1}, {vr(60,4)}, {sr(S_OUT,2)}")
    if Ctx.stamps:
        a.wait_vm()
    stamp(a, 10)
    write_stamps(a, 11, 64)
    a("s_endpgm")
    for s in Retry.stubs:
        a.raw(s)
    Retry.stubs.clear()
```

```python
from emit import *

KNAME = "concat_heads__ssm_conv_s4__linear_kernel_hedgehog__prompt_kernel"

S_U, S_ARE, S_AIM, S_BRE, S_BIM, S_CRE, S_CIM, S_LDT = 4, 6, 8, 10, 12, 14, 16, 18
S_DSK, S_X, S_W, S_WPHI, S_WO, S_OUT, S_DBG, S_WS = 20, 22, 24, 26, 28, 30, 32, 34

WS_UT = 0
WS_YT = 2 << 20
WS_O = 4 << 20
WS_KVP = 6 << 20
KVP_STRIDE = 3072
WS_FL = 7 << 20
FL_FU = WS_FL
FL_FY = WS_FL + 4096
FL_FK = WS_FL + 8192
FL_FO = WS_FL + 12288
FL_EB = WS_FL + 16384
FL_EA = WS_FL + 16384 + 128
FL_FC = WS_FL + 32768
WS_DBG = 8 << 20

TAG_MUL = 0x9E3779B1
TAG_ADD = 0x7F4A7C15
SPIN_MAX = 400000


class Ctx:
    stamps = False
    dump = None


def poll_flags(a, name, vaddr, vtmp, sbase, stag, scnt, sleep=1):
    a.wait_vm()
    a(f"s_mov_b32 s{scnt}, 0")
    a.label(f"{name}_spin")
    a.raw(f"    global_load_dword v{vtmp}, v{vaddr}, {sr(sbase, 2)} sc1")
    a.raw(f"    s_add_u32 s{scnt}, s{scnt}, 1")
    a.raw(f"    s_cmp_gt_u32 s{scnt}, {SPIN_MAX}")
    a.raw(f"    s_cbranch_scc1 {name}_done")
    a.raw(f"    s_waitcnt vmcnt(0)")
    a.raw(f"    v_cmp_ne_u32 vcc, s{stag}, v{vtmp}")
    a.raw(f"    s_nop 1")
    a.raw(f"    s_cbranch_vccz {name}_done")
    if sleep:
        a.raw(f"    s_sleep {sleep}")
    a.raw(f"    s_branch {name}_spin")
    a.raw(f"{name}_done:")
    a.raw(f"    s_waitcnt vmcnt(0)")
    a.forget_vm = True
    a.vm = []


def store_flag(a, vaddr, vtag, sbase):
    a("s_mov_b64 exec, 1")
    a(f"global_store_dword v{vaddr}, v{vtag}, {sr(sbase, 2)} sc1")
    a("s_mov_b64 exec, -1")


def stamp(a, idx, sbase=80):
    if Ctx.stamps:
        a(f"s_memrealtime {sr(sbase + 2 * idx, 2)}")
        a.wait_lg()


def write_stamps(a, n, vt, sbase=80):
    if not Ctx.stamps:
        return
    a.wait_all()
    a(f"v_lshrrev_b32 v{vt}, 6, v0")
    a(f"v_lshlrev_b32 v{vt}, 6, v{vt}")
    a(f"s_lshl_b32 s78, s2, 8")
    a(f"s_add_u32 s78, s78, {WS_DBG}")
    a(f"v_add_u32 v{vt}, s78, v{vt}")
    a("s_mov_b64 exec, 1")
    for i in range(n):
        a(f"v_mov_b32 v{vt + 1}, s{sbase + 2 * i}")
        a(f"global_store_dword v{vt}, v{vt + 1}, {sr(S_WS, 2)} offset:{4 * i}")
    a("s_mov_b64 exec, -1")


def interleave(a, groups, fill, per):
    fill = list(fill)
    for g in groups:
        for t in g:
            a(t)
        for _ in range(per):
            if fill:
                a(fill.pop(0))
    return fill


class Retry:
    stubs = []


def checked(a, name, k, loads, regs, n, vtmp, scnt):
    if n == 4:
        a(f"v_max3_u32 v{vtmp}, v{regs}, v{regs+1}, v{regs+2}")
        a(f"v_max_u32 v{vtmp}, v{vtmp}, v{regs+3}")
    else:
        a(f"v_max3_u32 v{vtmp}, v{regs}, v{regs+1}, v{regs+2}")
    a(f"v_cmp_eq_u32 vcc, -1, v{vtmp}")
    a(f"s_cbranch_vccnz {name}_r{k}")
    a.raw(f"{name}_k{k}:")
    st = [f"{name}_r{k}:"]
    st += ["    " + t for t in loads[k:]]
    st += [f"    s_add_u32 s{scnt}, s{scnt}, 1",
           f"    s_cmp_gt_u32 s{scnt}, {SPIN_MAX}",
           f"    s_waitcnt vmcnt(0)",
           f"    s_cbranch_scc1 {name}_k{k}",
           f"    v_max3_u32 v{vtmp}, v{regs}, v{regs+1}, v{regs+2}"]
    if n == 4:
        st += [f"    v_max_u32 v{vtmp}, v{vtmp}, v{regs+3}"]
    st += [f"    v_cmp_eq_u32 vcc, -1, v{vtmp}",
           f"    s_nop 1",
           f"    s_cbranch_vccnz {name}_r{k}",
           f"    s_branch {name}_k{k}"]
    Retry.stubs.append("\n".join(st))
```

```python
import sys
from gen_common import *
import gen_a
try:
    import gen_b
except ImportError:
    gen_b = None

HEADER = open("concat_heads__ssm_conv_s4__linear_kernel_hedgehog__prompt.s.ref").read().split("; @launch")[0]

def generate(do_a=True, do_b=True, prefetch=True):
    a = Asm()
    stamp(a, 0)
    a("s_cmp_ge_u32 s2, 512")
    a("s_cbranch_scc1 K_end")
    a("s_load_dwordx16 s[4:19], s[0:1], 0")
    a("s_load_dwordx16 s[20:35], s[0:1], 64")
    if prefetch:
        a("s_getpc_b64 s[36:37]")
        a("s_and_b32 s36, s36, 0xffffff00")
        a("s_lshr_b32 s38, s2, 3")
        a("s_lshl_b32 s38, s38, 9")
        a("v_lshrrev_b32 v1, 6, v0")
        a("v_lshl_add_u32 v1, v1, 7, s38")
        a("v_min_u32 v1, CODE_BYTES-4, v1")
        a("s_mov_b64 exec, 1")
        a("global_load_dword v255, v1, s[36:37]")
        a("s_mov_b64 exec, -1")
    a("s_cmp_ge_u32 s2, 256")
    a("s_cbranch_scc1 K_conv")
    lg, vm = list(a.lg), list(a.vm)
    if do_b and gen_b:
        gen_b.gen_b(a)
    else:
        a("s_endpgm")
    a.label("K_conv")
    a.lg, a.vm = list(lg), list(vm)
    if do_a:
        gen_a.gen_a(a)
    a.raw("K_end:")
    a.raw("    s_endpgm")
    a.raw("K_last:")
    body = a.text()
    txt = HEADER + f"""; @launch grid=(512,1,1) block=(256,1,1) lds=81920
.amdgcn_target "amdgcn-amd-amdhsa--gfx950"
.text
.globl {KNAME}
.p2align 8
.type {KNAME},@function
{KNAME}:
.set CODE_BYTES, K_last-{KNAME}
{body}
.section .rodata,"a"
.p2align 6
.amdhsa_kernel {KNAME}
  .amdhsa_next_free_vgpr 256
  .amdhsa_next_free_sgpr 102
  .amdhsa_accum_offset {getattr(Ctx,'accum',256)}
  .amdhsa_group_segment_fixed_size 0
  .amdhsa_kernarg_size 128
  .amdhsa_user_sgpr_count 2
  .amdhsa_user_sgpr_kernarg_segment_ptr 1
  .amdhsa_system_sgpr_workgroup_id_x 1
.end_amdhsa_kernel
"""
    return txt, a

if __name__ == "__main__":
    out = sys.argv[1]
    Ctx.stamps = "stamps" in sys.argv
    txt, a = generate(do_a="noa" not in sys.argv, do_b="nob" not in sys.argv, prefetch="nopf" not in sys.argv)
    open(out, "w").write(txt)
    print("instructions", a.count, "nop states", a.nops)
```

```python
from gen_common import *

CH = 32768
CS = 4160
RED = 16640
YRE = RED + 8192
UB = 0
UL = 4608
CB0 = 2 * UL

sA, sCG, sJ, sW, sC, sMH, sT0, sT1, sT2, sTAG, sCNT, sLD, sDS, sE = 36, 37, 38, 39, 40, 41, 42, 43, 44, 45, 46, 47, 48, 49
sPE, sPO, sK0, sK1, sUB, sCB = 50, 51, 52, 53, 54, 55
sM0, sM1, sM2 = 56, 58, 60
sK2 = 62


def cmul(a, d, x, y, t):
    a(f"v_pk_mul_f32 {vr(t,2)}, {vr(x,2)}, {vr(y,2)} op_sel:[1,1] op_sel_hi:[1,0] neg_lo:[0,1]")
    a(f"v_pk_fma_f32 {vr(d,2)}, {vr(x,2)}, {vr(y,2)}, {vr(t,2)} op_sel:[0,0,0] op_sel_hi:[0,1,1]")


def transpose(a, r0, r1, tmp, vw, vr0, vr1, dst, tb):
    for i in range(8):
        a(f"v_perm_b32 v{tmp+i}, v{r1+i//2}, v{r0+i//2}, s{sPO if i & 1 else sPE}")
        a(f"ds_write_b32 v{vw}, v{tmp+i} offset:{tb + i*128}")
    a.wait_lg()
    a("s_barrier")
    a(f"ds_read_b128 {vr(dst,4)}, v{vr0} offset:{tb}")
    a(f"ds_read_b128 {vr(dst+4,4)}, v{vr1} offset:{tb}")


def gen_a(a):
    vL, vM, vP = 1, 2, 3
    vTW, vTR0, vTR1 = 4, 5, 6
    vT, vT2, vT3, vTAG = 7, 8, 9, 10
    (vS0, vS1, vFU, vFP, vUG, vYC, vK, vK3, vKB, vUW, vUZ, vCA, vCB, vRW, vRR, vUS, vYW, vYR,
     vY0, vY1, vO0, vO1, vSR0, vSR1, vFV) = range(200, 225)
    vSW = 226
    M1 = 236
    ZR = 240
    a(f"s_sub_u32 s{sA}, s2, 256")
    a(f"s_and_b32 s{sCG}, s{sA}, 7")
    a(f"s_lshr_b32 s{sJ}, s{sA}, 3")
    a(f"v_lshrrev_b32 v{vT}, 6, v0")
    a(f"v_and_b32 v{vL}, 63, v0")
    a(f"v_readfirstlane_b32 s{sW}, v{vT}")
    a(f"v_lshrrev_b32 v{vM}, 3, v{vL}")
    a(f"v_and_b32 v{vP}, 7, v{vL}")
    a(f"s_lshl_b32 s{sT0}, s{sJ}, 16")
    a(f"s_lshl_b32 s{sT1}, s{sW}, 14")
    a(f"s_add_u32 s{sT0}, s{sT0}, s{sT1}")
    a(f"s_lshl_b32 s{sT1}, s{sCG}, 7")
    a(f"s_add_u32 s{sT0}, s{sT0}, s{sT1}")
    a(f"v_lshlrev_b32 v{vT3}, 11, v{vM}")
    a(f"v_lshl_add_u32 v{vT3}, v{vP}, 4, v{vT3}")
    a(f"v_add_u32 v{vT}, s{sT0}, v{vT3}")
    a(f"s_lshl_b32 s{sA}, s{sCG}, 6")
    a(f"s_lshl_b32 s{sT2}, s{sJ}, 1")
    a(f"s_add_u32 s{sA}, s{sA}, s{sT2}")
    a(f"s_lshl_b32 s{sT2}, s{sA}, 1")
    a(f"s_lshl_b32 s{sT0}, s{sA}, 8")
    a(f"s_lshl_b32 s{sC}, s{sW}, 7")
    a(f"s_add_u32 s{sT0}, s{sT0}, s{sC}")
    a(f"v_lshl_add_u32 v{vT2}, v{vL}, 1, s{sT0}")
    a(f"s_add_u32 s{sT1}, s{sT1}, {FL_EA}")
    a.wait_lg()
    R0, R1 = 12, 16
    a(f"global_load_dwordx4 {vr(R0,4)}, v{vT}, {sr(S_U,2)}")
    a(f"global_load_dwordx4 {vr(R1,4)}, v{vT}, {sr(S_U,2)} offset:1024")
    a(f"s_load_dword s{sE}, {sr(S_WS,2)}, s{sT1}")
    a(f"s_load_dword s{sLD}, {sr(S_LDT,2)}, s{sT2}")
    a(f"s_load_dword s{sDS}, {sr(S_DSK,2)}, s{sT2}")
    PAR = 32
    for k, s in enumerate((S_ARE, S_AIM, S_BRE, S_BIM, S_CRE, S_CIM)):
        a(f"global_load_ushort v{PAR+k}, v{vT2}, {sr(s,2)}")
    a(f"s_lshr_b32 s{sC}, s{sW}, 1")
    a(f"s_and_b32 s{sMH}, s{sW}, 1")
    a(f"s_mul_i32 s{sUB}, s{sC}, {UL}")
    a(f"s_lshl_b32 s{sCB}, s{sC}, 15")
    a(f"s_add_u32 s{sCB}, s{sCB}, {CB0}")
    a(f"s_lshl_b32 s{sT0}, s{sJ}, 17")
    a(f"s_lshl_b32 s{sT1}, s{sW}, 15")
    a(f"s_add_u32 s{sT0}, s{sT0}, s{sT1}")
    a(f"s_lshl_b32 s{sT1}, s{sCG}, 7")
    a(f"s_add_u32 s{sT0}, s{sT0}, s{sT1}")
    a(f"v_add_u32 v{vO0}, s{sT0}, v{vT3}")
    a(f"v_add_u32 v{vO1}, 0x4000, v{vO0}")
    a(f"s_mov_b32 s{sPE}, 0x05040100")
    a(f"s_mov_b32 s{sPO}, 0x07060302")
    a(f"v_lshrrev_b32 v{vT}, 2, v{vM}")
    a(f"s_lshl_b32 s{sT0}, s{sW}, 1")
    a(f"v_add_u32 v{vT}, s{sT0}, v{vT}")
    a(f"v_xor_b32 v{vT}, v{vT}, v{vP}")
    a(f"v_lshlrev_b32 v{vT}, 4, v{vT}")
    a(f"v_lshl_add_u32 v{vT}, v{vP}, 10, v{vT}")
    a(f"v_and_b32 v{vT3}, 3, v{vM}")
    a(f"v_lshl_add_u32 v{vTW}, v{vT3}, 2, v{vT}")
    a(f"v_xor_b32 v{vT}, s{sT0}, v{vP}")
    a(f"v_lshlrev_b32 v{vT}, 4, v{vT}")
    a(f"v_lshl_add_u32 v{vT}, v{vM}, 7, v{vT}")
    a(f"s_lshl_b32 s{sT1}, s{sW}, 11")
    a(f"v_add_u32 v{vTR0}, s{sT1}, v{vT}")
    a(f"v_xor_b32 v{vTR1}, 16, v{vTR0}")
    a(f"v_add_u32 v{vTR1}, 1024, v{vTR1}")
    a(f"s_lshl_b32 s{sT0}, s{sCG}, 18")
    a(f"s_lshl_b32 s{sT1}, s{sW}, 16")
    a(f"s_add_u32 s{sT0}, s{sT0}, s{sT1}")
    a(f"s_lshl_b32 s{sT1}, s{sJ}, 7")
    a(f"s_add_u32 s{sT0}, s{sT0}, s{sT1}")
    a(f"v_lshlrev_b32 v{vT}, 4, v{vP}")
    a(f"v_add_u32 v{vT}, s{sT0}, v{vT}")
    a(f"v_lshl_add_u32 v{vS0}, v{vM}, 12, v{vT}")
    a(f"v_add_u32 v{vS1}, 0x8000, v{vS0}")
    a(f"v_lshl_add_u32 v{vY0}, v{vM}, 13, v{vT}")
    a(f"v_add_u32 v{vY0}, {WS_YT}, v{vY0}")
    a(f"v_add_u32 v{vY1}, 0x1000, v{vY0}")
    a(f"s_lshl_b32 s{sT0}, s{sA}, 12")
    a(f"s_lshl_b32 s{sT1}, s{sW}, 11")
    a(f"s_add_u32 s{sT1}, s{sT0}, s{sT1}")
    a(f"v_lshl_add_u32 v{vUG}, v{vL}, 4, s{sT1}")
    a(f"s_lshl_b32 s{sT1}, s{sW}, 10")
    a(f"s_add_u32 s{sT0}, s{sT0}, s{sT1}")
    a(f"s_add_u32 s{sT0}, s{sT0}, {WS_YT + 2048}")
    a(f"v_lshl_add_u32 v{vYC}, v{vL}, 4, s{sT0}")
    a(f"s_lshl_b32 s{sT0}, s{sCG}, 14")
    a(f"s_add_u32 s{sT0}, s{sT0}, {FL_FU}")
    a(f"s_lshl_b32 s{sT1}, s{sW}, 12")
    a(f"s_lshl_b32 s{sT2}, s{sJ}, 7")
    a(f"s_add_u32 s{sT1}, s{sT1}, s{sT2}")
    a(f"s_add_u32 s{sT1}, s{sT1}, s{sT0}")
    a(f"v_mov_b32 v{vFU}, s{sT1}")
    a(f"s_lshr_b32 s{sT1}, s{sJ}, 3")
    a(f"s_lshl_b32 s{sT1}, s{sT1}, 12")
    a(f"s_add_u32 s{sT0}, s{sT0}, s{sT1}")
    a(f"s_lshl_b32 s{sT1}, s{sW}, 10")
    a(f"s_add_u32 s{sT0}, s{sT0}, s{sT1}")
    a(f"v_lshl_add_u32 v{vFP}, v{vP}, 7, s{sT0}")
    for k in range(4):
        a(f"v_mov_b32 v{M1+k}, -1")
        a(f"v_mov_b32 v{ZR+k}, 0")
    a.wait_lg()
    a(f"s_mul_i32 s{sTAG}, s{sE}, {TAG_MUL}")
    a(f"s_add_u32 s{sTAG}, s{sTAG}, {TAG_ADD}")
    a(f"v_mov_b32 v{vTAG}, s{sTAG}")
    a(f"s_mov_b32 s{sCNT}, 0")
    stamp(a, 1)
    transpose(a, R0, R1, 20, vTW, vTR0, vTR1, 12, UB)
    a(f"global_store_dwordx4 v{vS0}, {vr(12,4)}, {sr(S_WS,2)} sc1")
    a(f"global_store_dwordx4 v{vS1}, {vr(16,4)}, {sr(S_WS,2)} sc1")
    a(f"global_store_dwordx4 v{vYC}, {vr(M1,4)}, {sr(S_WS,2)} offset:-2048 sc1")
    a(f"global_store_dwordx4 v{vYC}, {vr(M1,4)}, {sr(S_WS,2)} offset:2048 sc1")
    stamp(a, 2)

    a(f"s_lshl_b32 s{sT0}, s{sC}, 4")
    a(f"s_lshr_b32 s{sLD}, s{sLD}, s{sT0}")
    a(f"s_lshl_b32 s{sLD}, s{sLD}, 16")
    a(f"s_lshr_b32 s{sDS}, s{sDS}, s{sT0}")
    a(f"s_lshl_b32 s{sDS}, s{sDS}, 16")
    a(f"s_mov_b32 s{sK0}, 0x3fb8aa3b")
    a(f"s_mov_b32 s{sK1}, 0x32a57060")
    a(f"s_mov_b32 s{sK2}, 0x3f317218")
    vDT, vA, vB_ = 20, 21, 22
    a(f"v_mov_b32 v{vT3}, s{sLD}")
    a(f"v_mul_f32 v{vT}, s{sK0}, v{vT3}")
    a(f"v_fma_f32 v{vT2}, v{vT3}, s{sK0}, -v{vT}")
    a(f"v_fma_f32 v{vT2}, v{vT3}, s{sK1}, v{vT2}")
    a(f"v_exp_f32 v{vT}, v{vT}")
    a(f"v_mul_f32 v{vT2}, s{sK2}, v{vT2}")
    a(f"v_fma_f32 v{vT}, v{vT}, v{vT2}, v{vT}")
    a(f"v_cvt_pk_bf16_f32 v{vT}, v{vT}, v{vT}")
    a(f"v_lshlrev_b32 v{vDT}, 16, v{vT}")
    for k in range(6):
        a(f"v_lshlrev_b32 v{PAR+k}, 16, v{PAR+k}")
    a(f"v_mul_f32 v{vA}, v{vDT}, v{PAR}")
    a(f"v_mul_f32 v{vB_}, v{vDT}, v{PAR+1}")
    a(f"v_mul_f32 v{PAR+2}, v{vDT}, v{PAR+2}")
    a(f"v_mul_f32 v{PAR+3}, v{vDT}, v{PAR+3}")
    a(f"v_mul_f32 v{vA}, s{sK0}, v{vA}")
    a(f"v_mul_f32 v{vB_}, 0.15915494, v{vB_}")
    Z1, W8, Z256 = 40, 42, 44
    E3, P3 = 23, 46
    for k, tau in enumerate((1.0, 8.0, 256.0)):
        if k == 0:
            a(f"v_exp_f32 v{E3}, v{vA}")
            a(f"v_fract_f32 v{P3}, v{vB_}")
        else:
            lit = {8.0: "0x41000000", 256.0: "0x43800000"}[tau]
            a(f"v_mul_f32 v{E3+k}, {lit}, v{vA}")
            a(f"v_mul_f32 v{P3+k}, {lit}, v{vB_}")
            a(f"v_exp_f32 v{E3+k}, v{E3+k}")
            a(f"v_fract_f32 v{P3+k}, v{P3+k}")
    for k, z in enumerate((Z1, W8, Z256)):
        a(f"v_cos_f32 v{z}, v{P3+k}")
        a(f"v_sin_f32 v{z+1}, v{P3+k}")
    for k, z in enumerate((Z1, W8, Z256)):
        a(f"v_mul_f32 v{z}, v{E3+k}, v{z}")
        if z == W8:
            a(f"v_mul_f32_e64 v{z+1}, -v{E3+k}, v{z+1}")
        else:
            a(f"v_mul_f32 v{z+1}, v{E3+k}, v{z+1}")
    XB = 50
    XR_, XI, YR_, YI = 112, 128, 144, 160
    xreg = {}
    slot = {}
    for t in range(11):
        slot[t] = (0, t)
    for k, o in enumerate((0, 2, 4, 6, 8, 10)):
        slot[256 + o] = (1, k)
    for k, o in enumerate((0, 4, 8)):
        slot[512 + o] = (1, 6 + k)
        slot[768 + o] = (1, 9 + k)
    for B, h, r in ((1024, 0, 12), (1280, 0, 14), (1536, 1, 12), (1792, 1, 14)):
        slot[B] = (h, r)
        slot[B + 8] = (h, r + 1)
    col = {key: 8 * (r >> 2) + 4 * h + (r & 3) for key, (h, r) in slot.items()}
    bycol = {c: key for key, c in col.items()}
    xops = [(0, None, None)]
    xops += [(t, t - 1, Z1) for t in range(1, 11)]
    xops += [(256 + o, o, Z256) for o in (0, 2, 4, 6, 8, 10)]
    xops += [(512 + o, 256 + o, Z256) for o in (0, 4, 8)]
    xops += [(768 + o, 512 + o, Z256) for o in (0, 4, 8)]
    for B in (1024, 1280, 1536, 1792):
        xops += [(B + o, B - 256 + o, Z256) for o in (0, 8)]
    TX, TY, YA, YB = 26, 28, 30, 38
    a(f"v_cvt_pk_bf16_f32 v{YR_}, 1.0, v{W8}")
    a(f"v_cvt_pk_bf16_f32 v{YI}, 0, v{W8+1}")
    ycur = W8
    late = []
    late += [f"v_and_b32 v{vT}, 31, v{vL}", f"v_lshrrev_b32 v{vT2}, 5, v{vL}",
             f"v_lshlrev_b32 v{vK}, 4, v{vT}", f"s_add_u32 s{sT0}, s{sCB}, {4112 - 3584}",
             f"v_sub_u32 v{vK}, s{sT0}, v{vK}", f"v_lshlrev_b32 v{vT}, 10, v{vT2}",
             f"v_sub_u32 v{vK3}, v{vK}, v{vT}", f"v_mov_b32 v{vKB}, s{sCB}"]
    for n in range(31):
        key, src, z = xops[n]
        d = XB + 2 * n
        xreg[key] = d
        if src is None:
            cmul(a, d, PAR + 4, PAR + 2, TX)
        else:
            cmul(a, d, xreg[src], z, TX)
        if n < 30:
            yn = YA if n % 2 == 0 else YB
            cmul(a, yn, ycur, W8, TY)
            ycur = yn
        c = col[key]
        mate = bycol.get(c ^ 1)
        if mate is None or mate in xreg:
            lo = xreg[bycol[c & ~1]]
            hi = xreg[bycol.get(c | 1, key)]
            a(f"v_cvt_pk_bf16_f32 v{XR_+c//2}, v{lo}, v{hi}")
            a(f"v_cvt_pk_bf16_f32 v{XI+c//2}, v{lo+1}, v{hi+1}")
        if n < 30 and n % 2 == 1:
            m = (n + 2) // 2
            a(f"v_cvt_pk_bf16_f32 v{YR_+m}, v{YA}, v{YB}")
            a(f"v_cvt_pk_bf16_f32 v{YI+m}, v{YA+1}, v{YB+1}")
        if n == 20:
            a.comment("publish this wave's part of the transposed u tile (its y rows are cleared too)")
            a.wait_vm()
            store_flag(a, vFU, vTAG, S_WS)
    assert XB + 62 <= XR_
    a(f"s_lshl_b32 s{sT0}, s{sMH}, 13")
    a(f"s_add_u32 s{sT0}, s{sT0}, s{sCB}")
    a(f"v_lshlrev_b32 v{vT}, 4, v{vP}")
    a(f"v_lshl_add_u32 v{vT}, v{vL}, 7, v{vT}")
    a(f"v_add_u32 v{vSW}, s{sT0}, v{vT}")
    for q in range(1, 8):
        a(f"v_xor_b32 v{vSW+q}, {16*q}, v{vSW}")
    for q in range(4):
        a(f"ds_write_b128 v{vSW+q}, {vr(YR_+4*q,4)} offset:16384")
        a(f"ds_write_b128 v{vSW+4+q}, {vr(YI+4*q,4)} offset:16384")
    for q in range(4):
        a(f"ds_write_b128 v{vSW+q}, {vr(XR_+4*q,4)}")
        a(f"ds_write_b128 v{vSW+4+q}, {vr(XI+4*q,4)}")
    stamp(a, 3)
    for t in late:
        a(t)
    a(f"v_bfe_u32 v{vT}, v{vL}, 3, 1")
    a(f"v_lshl_add_u32 v{vT}, v{vT2}, 2, v{vT}")
    a(f"v_bfe_u32 v{vT3}, v{vL}, 2, 1")
    a(f"v_bfe_u32 v20, v{vL}, 4, 1")
    a(f"v_lshl_add_u32 v{vT3}, v{vT3}, 1, v20")
    a(f"v_bfe_u32 v20, v{vL}, 1, 1")
    a(f"v_lshl_add_u32 v{vT3}, v{vT3}, 1, v20")
    a(f"v_xor_b32 v{vT3}, v{vT3}, v{vT}")
    a(f"v_lshlrev_b32 v{vT3}, 4, v{vT3}")
    a(f"v_lshl_add_u32 v{vT3}, v{vT}, 7, v{vT3}")
    a(f"v_and_b32 v20, 1, v{vL}")
    a(f"v_lshl_add_u32 v{vT3}, v20, 3, v{vT3}")
    a(f"v_add_u32 v{vSR0}, s{sCB}, v{vT3}")
    a(f"v_xor_b32 v{vSR1}, 32, v{vSR0}")
    a(f"v_add_u32 v{vSR1}, 256, v{vSR1}")
    a(f"global_load_dword v{vFV}, v{vFP}, {sr(S_WS,2)} sc1")
    a.wait_lg()
    a("s_barrier")
    D = 32
    FA, FB = 48, 80
    NPF = 4
    vN, vG = 20, 21
    fill = [
        f"v_and_b32 v{vN}, 15, v{vL}", f"v_lshrrev_b32 v{vG}, 4, v{vL}",
        f"v_sub_u32 v{vT}, 2, v{vN}", f"v_and_b32 v{vT}, 3, v{vT}",
        f"v_lshlrev_b32 v{vT2}, 3, v{vG}", f"v_sub_u32 v{vT2}, v{vT2}, v{vN}",
        f"v_sub_u32 v{vT2}, v{vT2}, v{vT}", f"v_mul_u32_u24 v{vT}, {CS}, v{vT}",
        f"s_lshl_b32 s{sT0}, s{sMH}, 8", f"s_sub_u32 s{sT1}, s{sCB}, s{sT0}",
        f"s_add_u32 s{sT1}, s{sT1}, {2*(2050-1792-96)}",
        f"v_lshl_add_u32 v{vCA}, v{vT2}, 1, v{vT}", f"v_add_u32 v{vCA}, s{sT1}, v{vCA}",
        f"s_sub_u32 s{sT1}, s{sUB}, s{sT0}", f"s_add_u32 s{sT1}, s{sT1}, {2*(256-16-96)}",
        f"v_lshlrev_b32 v{vT}, 5, v{vN}",
        f"v_lshl_add_u32 v{vCB}, v{vG}, 4, v{vT}", f"v_add_u32 v{vCB}, s{sT1}, v{vCB}",
        f"s_add_u32 s{sT1}, s{sUB}, s{sT0}", f"v_lshl_add_u32 v{vUZ}, v{vL}, 2, s{sT1}",
        f"s_lshl_b32 s{sT0}, s{sMH}, 11", f"s_add_u32 s{sT1}, s{sUB}, s{sT0}",
        f"v_lshl_add_u32 v{vUW}, v{vL}, 4, s{sT1}",
        f"v_lshl_add_u32 v{vT}, v{vG}, 3, v{vT}",
        f"v_add_u32 v{vUS}, s{sT1}, v{vT}",
        f"s_add_u32 s{sT1}, s{sCB}, s{sT0}", f"s_add_u32 s{sT1}, s{sT1}, {YRE}",
        f"v_add_u32 v{vYW}, s{sT1}, v{vT}", f"v_lshl_add_u32 v{vYR}, v{vL}, 4, s{sT1}",
        f"s_lshl_b32 s{sT0}, s{sMH}, 12", f"s_add_u32 s{sT1}, s{sCB}, {RED}",
        f"s_add_u32 s{sT2}, s{sT1}, s{sT0}", f"v_lshl_add_u32 v{vRW}, v{vL}, 4, s{sT2}",
        f"s_xor_b32 s{sT0}, s{sT0}, 4096", f"s_add_u32 s{sT2}, s{sT1}, s{sT0}",
        f"v_lshl_add_u32 v{vRR}, v{vL}, 4, s{sT2}",
        f"s_mov_b32 s{sM0}, 0x80000000", f"s_mov_b32 s{sM0+1}, 0", f"s_mov_b32 s{sM1}, 0",
        f"s_mov_b32 s{sM1+1}, 0x80000000", f"s_mov_b32 s{sM2}, 0xaaaaaaaa", f"s_mov_b32 s{sM2+1}, 0xaaaaaaaa",
    ]
    for st in range(16 + NPF):
        if st < 16:
            fa, fb = FA + 4 * (st % 8), FB + 4 * (st % 8)
            a(f"ds_read_b64_tr_b16 {vr(fa,2)}, v{vSR0} offset:{1024*st}")
            a(f"ds_read_b64_tr_b16 {vr(fa+2,2)}, v{vSR1} offset:{1024*st}")
            a(f"ds_read_b64_tr_b16 {vr(fb,2)}, v{vSR0} offset:{16384+1024*st}")
            a(f"ds_read_b64_tr_b16 {vr(fb+2,2)}, v{vSR1} offset:{16384+1024*st}")
        if st >= NPF:
            k = st - NPF
            a(f"v_mfma_f32_32x32x16_bf16 {vr(D,16)}, {vr(FA+4*(k%8),4)}, {vr(FB+4*(k%8),4)}, {vr(D,16) if k else 0}")
            for _ in range(3):
                if fill:
                    a(fill.pop(0))
    for t in fill:
        a(t)
    stamp(a, 4)
    flag_check(a, "A_fu", vFV, vFP, S_WS, sTAG, sCNT, sleep=3)
    a("s_barrier")
    UR = 12
    a(f"global_load_dwordx4 {vr(UR,4)}, v{vUG}, {sr(S_WS,2)} sc1")
    a(f"global_load_dwordx4 {vr(UR+4,4)}, v{vUG}, {sr(S_WS,2)} offset:1024 sc1")
    stamp(a, 5)
    TA, TB_ = 48, 49
    a(f"v_cndmask_b32 v{D+9}, v{D+9}, v{D+8}, {sr(sM0,2)}")
    a(f"v_cndmask_b32 v{D+5}, v{D+5}, v{D+4}, {sr(sM1,2)}")
    a(f"v_cndmask_b32 v{TA}, v{D+12}, v{D+13}, {sr(sM2,2)}")
    a(f"v_cndmask_b32 v{TB_}, v{D+14}, v{D+15}, {sr(sM2,2)}")
    m1 = [0, 0, 1, 2, 2, 2, 3, 4, 4, 4, 5]
    m2 = [0, 0, 0, 1, 1, 1, 2, 2, 2, 2, 2]
    types = [
        (lambda o: D + 12 if o < 4 else (TA if o == 4 else D + 13), 1024, vK3, "all"),
        (lambda o: D + 14 if o < 4 else (TB_ if o == 4 else D + 15), 1280, vK3, "all"),
        (lambda o: D + m1[o], 256, vK, "hi"),
        (lambda o: D + 6 + m2[o], 512, vK, "hi"),
        (lambda o: D + 9 + m2[o], 768, vK, "hi"),
        (lambda o: D + o, 0, vK, "lo"),
    ]
    CB = 52
    a(f"ds_write_b32 v{vUZ}, v{ZR}")
    a(f"s_cmp_eq_u32 s{sMH}, 1")
    a.settle()
    a("s_cbranch_scc1 A_exp1")
    vm_save, lg_save = list(a.vm), list(a.lg)
    for mh in range(2):
        if mh == 1:
            a("s_branch A_exp_done")
            a.label("A_exp1")
            a.vm, a.lg = list(vm_save), list(lg_save)
        n = 0
        cur = "all"
        for ti, (src, B, va, ex) in enumerate(types):
            if ex != cur:
                cur = ex
                a(f"s_mov_b32 exec_lo, {0 if ex == 'hi' else -1}")
                a(f"s_mov_b32 exec_hi, {-1 if ex == 'hi' else 0}")
            for s in (2 * mh, 2 * mh + 1):
                c = CB + 4 * n
                n += 1
                for m in range(4):
                    a(f"v_cvt_pk_bf16_f32 v{c+m}, v{src(10-s-2*m)}, v{src(9-s-2*m)}")
                a(f"ds_write_b128 v{va}, {vr(c,4)} offset:{s*CS + 3584 - 2*B}")
        a("s_mov_b64 exec, 1")
        for s in (2 * mh, 2 * mh + 1):
            a(f"ds_write_b128 v{vKB}, {vr(ZR,4)} offset:{s*CS + 4144}")
            if s == 3:
                a(f"ds_write_b128 v{vKB}, {vr(ZR,4)} offset:{s*CS + 4128}")
                continue
            c = CB + 4 * n
            n += 1
            for m in range(4):
                lo, hi = 2 - s - 2 * m, 1 - s - 2 * m
                if lo < 0:
                    a(f"v_mov_b32 v{c+m}, 0")
                else:
                    a(f"v_cvt_pk_bf16_f32 v{c+m}, v{D+lo}, {('v%d' % (D+hi)) if hi >= 0 else '0'}")
            a(f"ds_write_b128 v{vKB}, {vr(c,4)} offset:{s*CS + 4128}")
        a("s_mov_b64 exec, -1")
        a.lg = a.lg + [dict(id=-1, regs=set(), smem=True)]
    a.label("A_exp_done")
    a(f"ds_write_b128 v{vUW}, {vr(UR,4)} offset:512")
    a(f"ds_write_b128 v{vUW}, {vr(UR+4,4)} offset:1536")
    a(f"s_lshl_b32 s{sT1}, s{sCG}, 7")
    a(f"s_add_u32 s{sT1}, s{sT1}, {FL_EA}")
    a(f"v_mov_b32 v{vT3}, s{sT1}")
    a(f"s_or_b32 s{sT0}, s{sJ}, s{sW}")
    a(f"s_cmp_lg_u32 s{sT0}, 0")
    a("s_cbranch_scc1 A_noep")
    a.raw("    s_mov_b64 exec, 1")
    a.raw(f"    global_store_dword v{vT3}, v{vTAG}, {sr(S_WS,2)} sc1")
    a.raw("    s_mov_b64 exec, -1")
    a.raw("A_noep:")
    a.wait_lg()
    a("s_barrier")
    stamp(a, 6)
    ACC = 32
    BUF = (64, 128)

    def reads(rl):
        b = BUF[rl & 1]
        out = []
        for k in range(8):
            out.append(f"ds_read_b128 {vr(b+32+4*k,4)}, v{vCB} offset:{512*k + 64*(3-rl)}")
            o = 512 * (7 - k) + 64 * (3 - rl)
            out.append(f"ds_read_b64 {vr(b+4*k,2)}, v{vCA} offset:{o}")
            out.append(f"ds_read_b64 {vr(b+4*k+2,2)}, v{vCA} offset:{o+8}")
        return out
    pairs = sorted([(mm, p) for mm in range(8) for p in range(8) if mm + p <= 7], key=lambda x: (max(x), x[0] + x[1]))
    first = reads(0)
    for r in first[:12]:
        a(r)
    first = first[12:]
    started = set()
    US = 192
    for rl in range(4):
        b = BUF[rl & 1]
        nxt = reads(rl + 1) if rl < 3 else [f"ds_read_b64 {vr(US+2*m,2)}, v{vUS} offset:{512 + 512*m}" for m in range(4)]
        if rl == 0:
            nxt = first + nxt
        for n, (mm, p) in enumerate(pairs):
            i = mm + p
            cin = vr(ACC + 4 * i, 4) if i in started else "0"
            started.add(i)
            a(f"v_mfma_f32_16x16x32_bf16 {vr(ACC+4*i,4)}, {vr(b+4*mm,4)}, {vr(b+32+4*p,4)}, {cin}")
            if nxt and (rl == 0 or n % 3 != 2):
                a(nxt.pop(0))
        assert not nxt
    stamp(a, 7)
    UX = 112
    for m in range(4):
        for e in range(4):
            src = US + 2 * m + (e >> 1)
            if e & 1:
                a(f"v_and_b32 v{UX+4*m+e}, 0xffff0000, v{src}")
            else:
                a(f"v_lshlrev_b32 v{UX+4*m+e}, 16, v{src}")
    KEEP = 96
    a(f"s_cmp_eq_u32 s{sMH}, 1")
    a.settle()
    a("s_cbranch_scc1 A_red1")
    lg_save = list(a.lg)
    for mh in range(2):
        if mh == 1:
            a("s_branch A_red_done")
            a.label("A_red1")
            a.lg = list(lg_save)
        send = ACC + 16 * (1 - mh)
        keep = ACC + 16 * mh
        for m in range(4):
            a(f"ds_write_b128 v{vRW}, {vr(send+4*m,4)} offset:{1024*m}")
        for k in range(16):
            a(f"v_fma_f32 v{KEEP+k}, v{UX+k}, s{sDS}, v{keep+k}")
        a.wait_lg()
    a.label("A_red_done")
    a("s_barrier")
    RR = 72
    for m in range(4):
        a(f"ds_read_b128 {vr(RR+4*m,4)}, v{vRR} offset:{1024*m}")
    a(f"v_add_u32 v{vUG}, {WS_YT}, v{vUG}")
    for m in range(4):
        a(f"v_pk_add_f32 {vr(KEEP+4*m,2)}, {vr(KEEP+4*m,2)}, {vr(RR+4*m,2)}")
        a(f"v_pk_add_f32 {vr(KEEP+4*m+2,2)}, {vr(KEEP+4*m+2,2)}, {vr(RR+4*m+2,2)}")
        a(f"v_cvt_pk_bf16_f32 v{US+2*m}, v{KEEP+4*m}, v{KEEP+4*m+1}")
        a(f"v_cvt_pk_bf16_f32 v{US+2*m+1}, v{KEEP+4*m+2}, v{KEEP+4*m+3}")
        a(f"ds_write_b64 v{vYW}, {vr(US+2*m,2)} offset:{512*m}")
    a.wait_lg()
    a(f"ds_read_b128 {vr(RR,4)}, v{vYR}")
    a(f"ds_read_b128 {vr(RR+4,4)}, v{vYR} offset:1024")
    a(f"global_store_dwordx4 v{vUG}, {vr(RR,4)}, {sr(S_WS,2)} sc1")
    a(f"global_store_dwordx4 v{vUG}, {vr(RR+4,4)}, {sr(S_WS,2)} offset:1024 sc1")
    stamp(a, 8)
    a.vm = []
    a.raw("    s_waitcnt vmcnt(0)")
    yl = [f"global_load_dwordx4 {vr(32,4)}, v{vY0}, {sr(S_WS,2)} sc1",
          f"global_load_dwordx4 {vr(36,4)}, v{vY1}, {sr(S_WS,2)} sc1"]
    for t in yl:
        a(t)
    checked(a, "A_y", 0, yl, 32, 4, vT, sCNT, sleep=2)
    checked(a, "A_y", 1, yl, 36, 4, vT, sCNT, sleep=2)
    stamp(a, 9)
    transpose(a, 32, 36, 40, vTW, vTR0, vTR1, 48, CB0)
    a(f"global_store_dwordx4 v{vO0}, {vr(48,4)}, {sr(S_OUT,2)}")
    a(f"global_store_dwordx4 v{vO1}, {vr(52,4)}, {sr(S_OUT,2)}")
    if Ctx.stamps:
        a.wait_vm()
    stamp(a, 10)
    write_stamps(a, 11, 60)
    a("s_endpgm")
    flush_stubs(a)
```

```python
from gen_common import *

WKB = 0
MISC = 16384
XR = 32768
KVA, ZA, ZERO, OT = MISC, MISC + 2560, MISC + 2688, MISC + 4096
XF = 128
HI = 32768


def xslot(s):
    return XR + 16384 * s


def wk_base(c):
    return WKB + 4096 * c


def wv_base(c):
    return xslot(2) + 4096 * c if c < 4 else xslot(0) + 4096 * (c - 4)


def wq_base(c):
    return xslot(1) + 4096 * c if c < 4 else WKB + 4096 * (c - 4)


def wo_base(hp):
    return (xslot(2), xslot(0), xslot(1), WKB)[hp >> 2] + 4096 * (hp & 3)


sXC, sJ, sTB, sHP, sW, sT0, sT1, sT2, sTAG, sCNT, sE = 36, 37, 38, 39, 40, 41, 42, 43, 44, 45, 46
sW4K, sL2E, sT64, sCB, sW1K = 47, 48, 49, 50, 51
sMA, sMB = 52, 54
sKV = 56
sOL = 68
sOS, sKS = 76, 4
sOG = 6
sWV, sWQ = 10, 12
sWO = 14
sXB, sKB, sROT, sR4 = 16, 18, 20, 21


def softmax_stream(P, E1, t):
    mx, mn, s1, s2 = t, t + 1, t + 2, t + 3
    E2 = P
    o = []
    o.append(f"v_max3_f32 v{mx}, v{P}, v{P+1}, v{P+2}")
    o.append(f"v_min3_f32 v{mn}, v{P}, v{P+1}, v{P+2}")
    for k in range(3, 15, 2):
        o.append(f"v_max3_f32 v{mx}, v{mx}, v{P+k}, v{P+k+1}")
        o.append(f"v_min3_f32 v{mn}, v{mn}, v{P+k}, v{P+k+1}")
    o.append(f"v_max_f32 v{mx}, v{mx}, v{P+15}")
    o.append(f"v_min_f32 v{mn}, v{mn}, v{P+15}")
    o.append(f"v_mul_f32 v{mx}, s{sL2E}, v{mx}")
    o.append(f"v_mul_f32 v{mn}, s{sL2E}, v{mn}")
    for k in range(16):
        o.append(f"v_fma_f32 v{E1+k}, v{P+k}, s{sL2E}, -v{mx}")
        o.append(f"v_fma_f32 v{E2+k}, -v{P+k}, s{sL2E}, v{mn}")
        o.append(f"v_exp_f32 v{E1+k}, v{E1+k}")
        o.append(f"v_exp_f32 v{E2+k}, v{E2+k}")
        if k == 2:
            o.append(f"v_add_f32 v{s1}, v{E1}, v{E1+1}")
            o.append(f"v_add_f32 v{s2}, v{E2}, v{E2+1}")
        elif k > 2:
            o.append(f"v_add_f32 v{s1}, v{s1}, v{E1+k-1}")
            o.append(f"v_add_f32 v{s2}, v{s2}, v{E2+k-1}")
    o.append(f"v_add_f32 v{s1}, v{s1}, v{E1+15}")
    o.append(f"v_add_f32 v{s2}, v{s2}, v{E2+15}")
    o.append(f"v_rcp_f32 v{s1}, v{s1}")
    o.append(f"v_rcp_f32 v{s2}, v{s2}")
    for k in range(0, 16, 2):
        for E, s in ((E1, s1), (E2, s2)):
            o.append(f"v_mul_f32 v{E+k}, v{s}, v{E+k}")
            o.append(f"v_mul_f32 v{E+k+1}, v{s}, v{E+k+1}")
        for E, s in ((E1, s1), (E2, s2)):
            o.append(f"v_cvt_pk_bf16_f32 v{E+k//2}, v{E+k}, v{E+k+1}")
    return o


def tr(dst, lo, hi, addr):
    return f"ds_read_b64_tr_b16 {vr(dst,2)}, v{hi if addr >= HI else lo} offset:{addr - HI if addr >= HI else addr}"


def gemm_groups(base, vlo, vhi, acc, WF, swap, blocks, first, nbuf=4, ahead=2):
    steps = [(c, s) for c in blocks for s in range(4)]

    def rd(n):
        c, s = steps[n]
        f = WF + 4 * (n % nbuf)
        return [tr(f, vlo, vhi, base(c) + 1024 * s), tr(f + 2, vlo, vhi, base(c) + 1024 * s + 256)]
    groups = [sum((rd(k) for k in range(ahead)), [])]
    for n, (c, s) in enumerate(steps):
        f, x = vr(WF + 4 * (n % nbuf), 4), vr(XF + 16 * c + 4 * s, 4)
        cin = "0" if (first and n == 0) else vr(acc, 16)
        g = [f"v_mfma_f32_32x32x16_bf16 {vr(acc,16)}, {x if swap else f}, {f if swap else x}, {cin}"]
        g += rd(n + ahead) if n + ahead < len(steps) else []
        groups.append(g)
    return groups


def merge(a, groups, *fills):
    fills = [(list(f), per) for f, per in fills]
    for i, g in enumerate(groups):
        for t in g:
            a(t)
        for f, per in fills:
            n = per(i) if callable(per) else per
            for _ in range(n):
                if f:
                    item = f.pop(0)
                    item() if callable(item) else a(item)
    return [f for f, _ in fills]


def gen_b(a):
    vL, vT, vT2, vT3, vTAG = 1, 2, 3, 4, 5
    vXG = 6
    vWK, vWX = 10, 11
    vXA = 12
    vTK, vTKh, vTVh = 16, 17, 18
    vL16, vT12 = 19, 20
    TS = 22
    vI, vG, vRp, vCp, vCG, vPH = 26, 27, 28, 29, 30, 31
    vRW, vZR, vKW, vZWr, vKR, vZRd, vTO, vOLp, vOW, vOR, vOGp, vWO0, vWO1, vFC, vFV, vRR = range(96, 112)
    SEL, WP = 112, 120
    AK, AV, WF = 32, 48, 64
    M1 = 80
    a("s_setprio 1")
    a(f"s_and_b32 s{sXC}, s2, 7")
    a(f"s_lshr_b32 s{sJ}, s2, 3")
    a(f"v_lshrrev_b32 v{vT}, 6, v0")
    a(f"v_and_b32 v{vL}, 63, v0")
    a(f"v_readfirstlane_b32 s{sW}, v{vT}")
    a(f"s_lshr_b32 s{sT0}, s{sXC}, 1")
    a(f"s_lshl_b32 s{sT0}, s{sT0}, 2")
    a(f"s_lshr_b32 s{sT1}, s{sJ}, 3")
    a(f"s_add_u32 s{sTB}, s{sT0}, s{sT1}")
    a(f"v_lshrrev_b32 v{vT}, 3, v{vL}")
    a(f"v_lshrrev_b32 v{vT2}, 4, v{vL}")
    a(f"v_and_b32 v{vT3}, 7, v{vL}")
    a(f"v_xor_b32 v{vT2}, v{vT2}, v{vT3}")
    a(f"v_lshlrev_b32 v{vT2}, 4, v{vT2}")
    a(f"v_lshl_add_u32 v{vT}, v{vT}, 10, v{vT2}")
    a(f"s_lshl_b32 s{sT0}, s{sTB}, 17")
    a(f"s_lshl_b32 s{sT1}, s{sW}, 15")
    a(f"s_add_u32 s{sT2}, s{sT0}, s{sT1}")
    a(f"s_lshl_b32 s{sW4K}, s{sW}, 12")
    a(f"v_add_u32 v{vXG}, s{sT2}, v{vT}")
    a(f"v_xor_b32 v{vXG+1}, 64, v{vXG}")
    a(f"v_add_u32 v{vXG+1}, 0x2000, v{vXG+1}")
    a(f"v_add_u32 v{vXG+2}, 0x4000, v{vXG}")
    a(f"v_add_u32 v{vXG+3}, 0x4000, v{vXG+1}")
    a.wait_lg()

    def rot_base(dst, src, pos, unit, srot, mask, extra=None):
        a(f"s_add_u32 s3, s{srot}, {pos}")
        a(f"s_and_b32 s3, s3, {mask}")
        a(f"s_mul_i32 s3, s3, {unit}")
        if extra is not None:
            a(f"s_add_u32 s3, s3, {extra}")
        a(f"s_add_u32 s{dst}, s{src}, s3")
        a(f"s_addc_u32 s{dst+1}, s{src+1}, 0")

    def dma_x1(c, q):
        if q == 0:
            rot_base(sXB, S_X, c, 128, sROT, 7)
        a(f"s_add_u32 m0, s{sW4K}, {xslot(c%3) + 1024*q}")
        return a(f"global_load_lds_dwordx4 v{vXG+q}, {sr(sXB,2)}")

    def dma_wk(c):
        rot_base(sKB, S_W, c, 64 * 3072, sROT, 7)
        a(f"s_add_u32 m0, s{sW1K}, {wk_base(c)}")
        return a(f"global_load_lds_dwordx4 v{vWK}, {sr(sKB,2)}")
    tok = {}

    def wpiece(key, col, blk0, ldsbase, m):
        def f():
            if m == 0:
                rot_base(sWV, S_W, blk0, 64 * 3072, sWQ, 7, col if col else None)
            else:
                a(f"s_add_u32 s{sWV}, s{sWV}, {16*3072}")
                a(f"s_addc_u32 s{sWV+1}, s{sWV+1}, 0")
            a(f"s_add_u32 m0, s{sW4K}, {ldsbase + 1024*m}")
            tok[key] = a(f"global_load_lds_dwordx4 v{vWX}, {sr(sWV,2)}")
        return f

    def wopiece(key, grp, m):
        def f():
            if m == 0:
                rot_base(sXB, sWO, grp, 0x20000, sR4, 3)
            elif m == 2:
                a(f"s_add_u32 s{sXB}, s{sXB}, 0x4000")
                a(f"s_addc_u32 s{sXB+1}, s{sXB+1}, 0")
            a(f"s_add_u32 m0, s{sW4K}, {wo_base(4*grp) + 1024*m}")
            tok[key] = a(f"global_load_lds_dwordx4 v{vWO1 if m & 1 else vWO0}, {sr(sXB,2)}")
        return f
    a(f"s_lshr_b32 s{sT1}, s{sJ}, 3")
    if getattr(Ctx, "rot", True):
        a(f"s_lshl_b32 s{sROT}, s{sT1}, 1")
        a(f"s_add_u32 s{sROT}, s{sROT}, s{sJ}")
        a(f"s_add_u32 s{sR4}, s{sT1}, s{sJ}")
    else:
        a(f"s_mov_b32 s{sROT}, 0")
        a(f"s_mov_b32 s{sR4}, 0")
    for q in range(4):
        tok[0] = dma_x1(0, q)
    a(f"s_mov_b32 s{sT0}, {FL_EB}")
    a(f"s_load_dword s{sE}, {sr(S_WS,2)}, s{sT0}")
    a(f"s_and_b32 s{sT0}, s{sXC}, 1")
    a(f"s_lshl_b32 s{sT0}, s{sT0}, 3")
    a(f"s_and_b32 s{sCB}, s{sJ}, 7")
    a(f"s_add_u32 s{sHP}, s{sT0}, s{sCB}")
    a(f"v_lshlrev_b32 v{vL16}, 4, v{vL}")
    for q in range(4):
        tok[1] = dma_x1(1, q)
    a(f"s_lshl_b32 s{sT0}, s{sHP}, 10")
    a(f"v_add_u32 v{vT}, s{sT0}, v{vL16}")
    a(f"s_add_u32 m0, s{sW4K}, {xslot(2)}")
    tok["phi"] = a(f"global_load_lds_dwordx4 v{vT}, {sr(S_WPHI,2)}")
    a(f"v_lshrrev_b32 v{vT}, 2, v{vL}")
    a(f"v_mul_u32_u24 v{vT}, 3072, v{vT}")
    a(f"v_and_b32 v{vCp}, 3, v{vL}")
    a(f"v_lshl_add_u32 v{vWX}, v{vCp}, 4, v{vT}")
    a(f"s_lshl_b32 s{sT0}, s{sHP}, 6")
    a(f"v_add_u32 v{vWX}, s{sT0}, v{vWX}")
    a(f"s_mul_i32 s{sT1}, s{sW}, {16*3072}")
    a(f"s_add_u32 s{sT1}, s{sT1}, 1024")
    a(f"v_add_u32 v{vWK}, s{sT1}, v{vWX}")
    a(f"s_lshl_b32 s{sW1K}, s{sW}, 10")
    dma_wk(0)
    a(f"s_lshl_b32 s{sT1}, s{sHP}, 11")
    a(f"s_add_u32 s{sT0}, s{sT2}, s{sT1}")
    a(f"s_add_u32 s{sT0}, s{sT0}, {WS_O}")
    sbase(a, sOS, S_WS, sT0)
    a(f"s_lshl_b32 s{sT0}, s{sHP}, 4")
    a(f"s_add_u32 s{sT0}, s{sT0}, s{sTB}")
    a(f"s_mul_i32 s{sT0}, s{sT0}, {KVP_STRIDE}")
    a(f"s_add_u32 s{sT0}, s{sT0}, {WS_KVP}")
    sbase(a, sKS, S_WS, sT0)
    a(f"v_mul_u32_u24 v{vT12}, 12, v0")
    for k in range(4):
        a(f"v_mov_b32 v{M1+k}, -1")
    dma_wk(1)
    a(f"global_store_dwordx3 v{vT12}, {vr(M1,3)}, {sr(sKS,2)} sc1")
    a(f"global_store_dwordx4 v{vL16}, {vr(M1,4)}, {sr(sOS,2)} sc1")
    a(f"global_store_dwordx4 v{vL16}, {vr(M1,4)}, {sr(sOS,2)} offset:1024 sc1")
    a(f"v_and_b32 v{vI}, 31, v{vL}")
    a(f"v_lshrrev_b32 v{vG}, 5, v{vL}")
    a(f"v_bfe_u32 v{vRp}, v{vL}, 2, 2")
    a(f"v_bfe_u32 v{vCG}, v{vL}, 4, 1")
    a(f"v_lshrrev_b32 v{vT2}, 1, v{vCp}")
    a(f"v_lshlrev_b32 v{vPH}, 9, v{vG}")
    a(f"v_lshl_add_u32 v{vPH}, v{vRp}, 5, v{vPH}")
    a(f"v_lshl_add_u32 v{vPH}, v{vCG}, 4, v{vPH}")
    a(f"v_lshl_add_u32 v{vPH}, v{vT2}, 3, v{vPH}")
    a(f"s_add_u32 s{sT0}, s{sW4K}, {xslot(2)}")
    a(f"v_add_u32 v{vPH}, s{sT0}, v{vPH}")
    a(f"v_bfe_u32 v{vT}, v{vL}, 1, 3")
    a(f"v_xor_b32 v{vT}, v{vT}, v{vG}")
    a(f"v_lshlrev_b32 v{vT}, 4, v{vT}")
    a(f"v_lshl_add_u32 v{vT}, v{vI}, 7, v{vT}")
    a(f"s_add_u32 s{sT0}, s{sW4K}, {XR}")
    a(f"v_add_u32 v{vXA}, s{sT0}, v{vT}")
    for s in range(1, 4):
        a(f"v_xor_b32 v{vXA+s}, {32*s}, v{vXA}")
    a(f"v_bfe_u32 v{vT}, v{vL}, 2, 1")
    a(f"v_cmp_eq_u32 {sr(sMA,2)}, v{vT}, v{vG}")
    a(f"v_cmp_eq_u32 {sr(sMB,2)}, 1, v{vCG}")
    a.wait_vm(tok["phi"])
    t = None
    for s in range(2):
        a(f"ds_read_b64_tr_b16 {vr(WP+4*s,2)}, v{vPH} offset:{256*s}")
        t = a(f"ds_read_b64_tr_b16 {vr(WP+4*s+2,2)}, v{vPH} offset:{256*s+128}")
    a.wait_lg()
    for q in range(4):
        tok[2] = dma_x1(2, q)
    stamp(a, 1)

    U = 32
    aw = []
    aw += [f"s_mul_i32 s{sTAG}, s{sE}, {TAG_MUL}", f"s_add_u32 s{sTAG}, s{sTAG}, {TAG_ADD}",
           f"v_mov_b32 v{vTAG}, s{sTAG}", f"s_mov_b32 s{sCNT}, 0", f"s_mov_b32 s{sL2E}, 0x3fb8aa3b"]
    aw += [f"v_cndmask_b32 v{WP+k}, 0, v{WP+k}, {sr(sMA,2)}" for k in range(8)]
    aw += [f"v_lshl_add_u32 v{U}, v{vG}, 3, v{vRp}", f"v_lshlrev_b32 v{U}, 6, v{U}",
           f"v_lshlrev_b32 v{U+1}, 3, v{vCp}", f"v_lshl_add_u32 v{U+1}, v{vCG}, 5, v{U+1}",
           f"v_add_u32 v{U+1}, v{U}, v{U+1}", f"v_add_u32 v{vTVh}, {HI}, v{U+1}",
           f"v_and_b32 v{U+1}, 1, v{vCp}", f"v_lshl_add_u32 v{U}, v{U+1}, 5, v{U}",
           f"v_lshl_add_u32 v{U}, v{vCG}, 4, v{U}", f"v_lshrrev_b32 v{U+1}, 1, v{vCp}",
           f"v_lshl_add_u32 v{vTK}, v{U+1}, 3, v{U}", f"v_add_u32 v{vTKh}, {HI}, v{vTK}"]
    aw += [f"s_add_u32 s{sWQ}, s{sROT}, s{sW}"]
    aw += [f"v_bfe_u32 v{U}, v{vL}, 2, 1", f"v_bfe_u32 v{U+1}, v{vL}, 3, 1",
           f"v_lshl_add_u32 v{U+2}, v{U+1}, 2, v{vCp}", f"v_and_b32 v{U+3}, 1, v{U+2}",
           f"v_lshlrev_b32 v{U+3}, 4, v{U+3}", f"v_mov_b32 v{U+4}, 0x3f80", f"v_lshlrev_b32 v{U+3}, v{U+3}, v{U+4}",
           f"v_cmp_eq_u32 vcc, v{vCG}, v{vG}", f"v_cndmask_b32 v{U+3}, 0, v{U+3}, vcc",
           f"v_lshrrev_b32 v{U+4}, 1, v{U+2}", f"v_lshl_add_u32 v{U+4}, v{U}, 2, v{U+4}"]
    for k in range(8):
        aw += [f"v_cmp_eq_u32 vcc, {k}, v{U+4}", f"v_cndmask_b32 v{SEL+k}, 0, v{U+3}, vcc"]
    aw += [f"v_lshl_add_u32 v{U+2}, v{U}, 3, v{U+2}", f"v_lshl_add_u32 v{U+2}, v{vG}, 4, v{U+2}",
           f"v_lshl_add_u32 v{U+2}, v{vCG}, 5, v{U+2}", f"v_lshlrev_b32 v{U+2}, 1, v{U+2}",
           f"v_add_u32 v{vZWr}, {ZA}, v{U+2}"]
    aw += [f"s_add_u32 s{sT0}, s{sW4K}, {MISC}", f"v_add_u32 v{vRW}, s{sT0}, v{vL16}",
           f"s_add_u32 s{sT0}, s{sW1K}, {MISC}", f"v_add_u32 v{vRR}, s{sT0}, v{vL16}",
           f"v_lshlrev_b32 v{U}, 2, v{vG}", f"v_lshl_add_u32 v{U}, v{vI}, 3, v{U}", f"v_add_u32 v{vZR}, {MISC}, v{U}"]
    aw += [f"v_mul_u32_u24 v{U}, 80, v{vI}", f"v_lshl_add_u32 v{U}, v{vG}, 4, v{U}",
           f"s_lshr_b32 s{sT0}, s{sW}, 1", f"s_lshl_b32 s{sT0}, s{sT0}, 5", f"s_and_b32 s{sT1}, s{sW}, 1",
           f"s_lshl_b32 s{sT1}, s{sT1}, 3", f"s_add_u32 s{sT0}, s{sT0}, s{sT1}", f"s_add_u32 s{sT0}, s{sT0}, {KVA}",
           f"v_add_u32 v{vKW}, s{sT0}, v{U}",
           f"v_bfe_u32 v{U}, v{vL}, 3, 2", f"v_lshl_add_u32 v{U}, v{U}, 2, v{vCp}", f"v_lshl_add_u32 v{U}, v{vG}, 4, v{U}",
           f"v_mul_u32_u24 v{U}, 80, v{U}", f"v_add_u32 v{U}, {KVA}, v{U}", f"v_mov_b32 v{U+1}, {ZERO}",
           f"v_cndmask_b32 v{vKR}, v{U+1}, v{U}, {sr(sMA,2)}",
           f"v_lshlrev_b32 v{U}, 6, v{vG}", f"v_add_u32 v{U}, {ZA}, v{U}",
           f"v_cndmask_b32 v{vZRd}, v{U+1}, v{U}, {sr(sMA,2)}"]
    aw += [f"s_mul_i32 s{sT0}, s{sHP}, {16*KVP_STRIDE}", f"s_add_u32 s{sT0}, s{sT0}, {WS_KVP + KVP_STRIDE}",
           f"s_add_u32 s{sKV}, s{S_WS}, s{sT0}", f"s_addc_u32 s{sKV+1}, s{S_WS+1}, 0"]
    for k in range(1, 6):
        aw += [f"s_add_u32 s{sKV+2*k}, s{sKV+2*k-2}, {3*KVP_STRIDE}", f"s_addc_u32 s{sKV+2*k+1}, s{sKV+2*k-1}, 0"]
    aw += [f"s_lshl_b32 s{sT64}, s{sXC}, 2", f"s_lshr_b32 s{sT0}, s{sJ}, 3", f"s_add_u32 s{sT64}, s{sT64}, s{sT0}"]
    aw += [f"v_lshrrev_b32 v{U}, 3, v{vL}", f"v_and_b32 v{U+1}, 7, v{vL}",
           f"v_lshlrev_b32 v{U+2}, 1, v{vCG}", f"v_xor_b32 v{U+2}, v{U+2}, v{U+1}", f"v_lshlrev_b32 v{U+2}, 4, v{U+2}",
           f"v_lshl_add_u32 v{vWO0}, v{U}, 10, v{U+2}", f"v_xor_b32 v{vWO1}, 64, v{vWO0}",
           f"v_add_u32 v{vWO1}, 0x2000, v{vWO1}",
           f"s_lshl_b32 s{sT0}, s{sCB}, 7", f"s_lshl_b32 s{sT1}, s{sW}, 15", f"s_add_u32 s{sT2}, s{sT0}, s{sT1}",
           f"s_add_u32 s{sWO}, s{S_WO}, s{sT2}", f"s_addc_u32 s{sWO+1}, s{S_WO+1}, 0",
           f"v_lshlrev_b32 v{U+2}, 4, v{U+1}", f"v_lshl_add_u32 v{vOGp}, v{U}, 11, v{U+2}",
           f"s_lshl_b32 s{sT0}, s{sT64}, 17", f"s_add_u32 s{sT0}, s{sT0}, s{sT2}", f"s_add_u32 s{sT0}, s{sT0}, 1024",
           f"s_add_u32 s{sOG}, s{S_OUT}, s{sT0}", f"s_addc_u32 s{sOG+1}, s{S_OUT+1}, 0",
           f"s_add_u32 s{sOG+2}, s{sOG}, 0x4000", f"s_addc_u32 s{sOG+3}, s{sOG+1}, 0",
           f"s_mul_i32 s{sT0}, s{sW}, 2304", f"s_add_u32 s{sT0}, s{sT0}, {OT}",
           f"v_mul_u32_u24 v{U}, 144, v{U}", f"v_add3_u32 v{vOR}, v{U}, v{U+2}, s{sT0}",
           f"v_and_b32 v{U+1}, 15, v{vL}", f"v_lshrrev_b32 v{U+2}, 4, v{vL}",
           f"v_mul_u32_u24 v{U}, 144, v{U+1}", f"v_lshl_add_u32 v{U}, v{U+2}, 3, v{U}", f"v_add_u32 v{vOW}, s{sT0}, v{U}",
           f"v_lshl_add_u32 v{U}, v{U+2}, 3, v{vRp}", f"v_lshlrev_b32 v{U}, 7, v{U}", f"v_lshl_add_u32 v{U}, v{vCp}, 3, v{U}",
           f"v_lshrrev_b32 v{U+2}, 1, v{vRp}", f"v_lshl_add_u32 v{U+2}, v{vCG}, 1, v{U+2}",
           f"v_lshl_add_u32 v{vTO}, v{U+2}, 5, v{U}",
           f"v_lshlrev_b32 v{U}, 4, v{U+1}", f"v_lshl_add_u32 v{U}, v{vCG}, 10, v{U}", f"v_lshl_add_u32 v{vOLp}, v{vG}, 9, v{U}",
           f"s_lshl_b32 s{sT0}, s{sT64}, 16", f"s_lshr_b32 s{sT1}, s{sW}, 1", f"s_lshl_b32 s{sT1}, s{sT1}, 15",
           f"s_add_u32 s{sT0}, s{sT0}, s{sT1}", f"s_and_b32 s{sT1}, s{sW}, 1", f"s_lshl_b32 s{sT1}, s{sT1}, 8",
           f"s_add_u32 s{sT0}, s{sT0}, s{sT1}", f"s_add_u32 s{sT0}, s{sT0}, {WS_O + 4096}",
           ]
    for k in range(4):
        aw += [f"s_add_u32 s{sT1}, s{sR4}, {k}", f"s_and_b32 s{sT1}, s{sT1}, 3", f"s_lshl_b32 s{sT1}, s{sT1}, 13",
               f"s_add_u32 s{sT1}, s{sT1}, s{sT0}",
               f"s_add_u32 s{sOL+2*k}, s{S_WS}, s{sT1}", f"s_addc_u32 s{sOL+2*k+1}, s{S_WS+1}, 0"]
    aw += [f"v_lshlrev_b32 v{U}, 4, v{U+1}", f"v_add_u32 v{U}, s{sHP}, v{U}",
           f"s_lshr_b32 s{sT0}, s{sT64}, 1", f"s_lshl_b32 s{sT0}, s{sT0}, 4", f"v_add_u32 v{U+1}, s{sT0}, v{U+1}",
           f"v_cndmask_b32 v{U}, v{U}, v{U+1}, {sr(sMB,2)}", f"v_lshlrev_b32 v{U}, 7, v{U}",
           f"v_add_u32 v{vFC}, {FL_FC}, v{U}",
           f"s_lshl_b32 s{sT0}, s{sTB}, 4", f"s_add_u32 s{sT0}, s{sT0}, s{sHP}", f"s_lshl_b32 s{sT0}, s{sT0}, 7",
           f"s_add_u32 s{sT0}, s{sT0}, {FL_FC}", f"v_mov_b32 v{vPH}, s{sT0}"]

    def take(n):
        k = 0
        while aw and (k < n or aw[0].startswith("s_addc")):
            a(aw.pop(0))
            k += 1
    per = (len(aw) + 27) // 28

    for c in range(8):
        if c == 7:
            a.wait_vm(tok["k3"])
        a.wait_vm(tok[c])
        t = None
        for s in range(4):
            t = a(f"ds_read_b128 {vr(XF+16*c+4*s,4)}, v{vXA+s} offset:{16384*(c%3)}")
        if c < 7:
            take(per)
        if c < 5:
            a.wait_lg(t)
            for q in range(4):
                tok[c + 3] = dma_x1(c + 3, q)
                if q < 3:
                    take(per)
        else:
            take(3 * per)
        if c in (4, 5, 6):
            for k in (2 * c - 6, 2 * c - 5):
                tok[f"k{k}"] = dma_wk(k)
    take(len(aw))
    a.wait_lg()
    a("s_barrier")
    store_flag(a, vPH, vTAG, S_WS)
    stamp(a, 2)
    g = gemm_groups(wk_base, vTK, vTKh, AK, WF, False, range(4), True)
    merge(a, g, ([wpiece("v0", 2048, 0, xslot(2), m) for m in range(4)], lambda i: 1 if i % 4 == 1 else 0))
    a.wait_vm(tok["k7"])
    a("s_barrier")
    g = gemm_groups(wk_base, vTK, vTKh, AK, WF, False, range(4, 8), False)
    merge(a, g, ([wpiece("v1", 2048, 4, xslot(0), m) for m in range(4)], lambda i: 1 if i % 4 == 1 else 0))
    KB, P, E1 = 80, 32, 80
    a.wait_vm(tok["v0"])
    a("s_barrier")
    g1 = gemm_groups(wv_base, None, vTVh, AV, WF, True, range(4), True)
    for t in g1[0] + g1[1] + g1[2]:
        a(t)
    for k in range(8):
        a(f"v_cvt_pk_bf16_f32 v{KB+k}, v{AK+2*k}, v{AK+2*k+1}")
    a(f"v_mfma_f32_32x32x16_bf16 {vr(P,16)}, {vr(WP,4)}, {vr(KB,4)}, 0")
    a(f"v_mfma_f32_32x32x16_bf16 {vr(P,16)}, {vr(WP+4,4)}, {vr(KB+4,4)}, {vr(P,16)}")
    wq0 = [wpiece("q0", 0, 0, xslot(1), m) for m in range(4)]
    for t in g1[3] + g1[4]:
        a(t)
    wq0.pop(0)()
    sm = softmax_stream(P, E1, TS)
    sm, _ = merge(a, g1[5:], (sm, 6), (wq0, lambda i: 1 if i % 4 == 2 else 0))
    a.wait_vm(tok["v1"])
    a("s_barrier")
    g2 = gemm_groups(wv_base, None, vTVh, AV, WF, True, range(4, 8), False)
    sm, _ = merge(a, g2, (sm, 6), ([wpiece("q1", 0, 4, WKB, m) for m in range(4)], lambda i: 1 if i % 4 == 2 else 0))
    for t in sm:
        a(t)
    stamp(a, 3)
    PP, PN = E1, P
    DP, DN, VB, APK, ANK = 64, 32, 88, 48, 56
    PN2 = 88
    for k in range(0, 8, 2):
        a(f"v_mov_b64 {vr(PN2+k,2)}, {vr(PN+k,2)}")
    a(f"v_mfma_f32_32x32x16_bf16 {vr(DP,16)}, {vr(PP,4)}, {vr(SEL,4)}, 0")
    a(f"v_mfma_f32_32x32x16_bf16 {vr(DP,16)}, {vr(PP+4,4)}, {vr(SEL+4,4)}, {vr(DP,16)}")
    a(f"v_mfma_f32_32x32x16_bf16 {vr(DN,16)}, {vr(PN2,4)}, {vr(SEL,4)}, 0")
    a(f"v_mfma_f32_32x32x16_bf16 {vr(DN,16)}, {vr(PN2+4,4)}, {vr(SEL+4,4)}, {vr(DN,16)}")
    VB = 80
    for k in range(8):
        a(f"v_cvt_pk_bf16_f32 v{VB+k}, v{AV+2*k}, v{AV+2*k+1}")
    for k in range(8):
        a(f"v_cvt_pk_bf16_f32 v{APK+k}, v{DP+2*k}, v{DP+2*k+1}")
    ZS = 22
    for k in range(0, 8, 2):
        a(f"v_pk_add_f32 {vr(DP+k,2)}, {vr(DP+k,2)}, {vr(DP+8+k,2)}")
    for k in range(8):
        a(f"v_cvt_pk_bf16_f32 v{ANK+k}, v{DN+2*k}, v{DN+2*k+1}")
    a(f"v_pk_add_f32 {vr(88,2)}, {vr(DP,2)}, {vr(DP+2,2)}")
    a(f"v_pk_add_f32 {vr(90,2)}, {vr(DP+4,2)}, {vr(DP+6,2)}")
    KP, KN = DP, DN
    a(f"v_mfma_f32_32x32x16_bf16 {vr(KP,16)}, {vr(APK,4)}, {vr(VB,4)}, 0")
    a(f"v_mfma_f32_32x32x16_bf16 {vr(KP,16)}, {vr(APK+4,4)}, {vr(VB+4,4)}, {vr(KP,16)}")
    for k in range(0, 8, 2):
        a(f"v_pk_add_f32 {vr(DN+k,2)}, {vr(DN+k,2)}, {vr(DN+8+k,2)}")
    a(f"v_pk_add_f32 {vr(92,2)}, {vr(DN,2)}, {vr(DN+2,2)}")
    a(f"v_pk_add_f32 {vr(94,2)}, {vr(DN+4,2)}, {vr(DN+6,2)}")
    a(f"v_mfma_f32_32x32x16_bf16 {vr(KN,16)}, {vr(ANK,4)}, {vr(VB,4)}, 0")
    a(f"v_mfma_f32_32x32x16_bf16 {vr(KN,16)}, {vr(ANK+4,4)}, {vr(VB+4,4)}, {vr(KN,16)}")
    a(f"v_pk_add_f32 {vr(88,2)}, {vr(88,2)}, {vr(90,2)}")
    a(f"v_pk_add_f32 {vr(92,2)}, {vr(92,2)}, {vr(94,2)}")
    a(f"v_add_f32 v{ZS}, v88, v89")
    a(f"v_add_f32 v{ZS+1}, v92, v93")
    a(f"v_lshrrev_b32 v{vT}, 1, v{vL16}")
    a(f"s_add_u32 s{sT0}, s{sW4K}, s{sW1K}")
    a(f"s_add_u32 s{sT0}, s{sT0}, {MISC}")
    a(f"v_add_u32 v{vT}, s{sT0}, v{vT}")
    a(f"ds_write_b64 v{vT}, {vr(ZS,2)}")
    SV = 48
    for k in range(8):
        a(f"v_cndmask_b32 v{SV+k}, v{KP+k}, v{KP+8+k}, {sr(sMB,2)}")
    RQ, RZ, PB = 64, 80, 88
    a(f"s_cmp_lt_u32 s{sW}, 2")
    a("s_cbranch_scc1 B_red_lo")
    a(f"s_cmp_eq_u32 s{sW}, 2")
    a("s_cbranch_scc1 B_red_2")
    a("s_branch B_red_3")
    a.raw("B_red_lo:")
    a(f"s_cmp_eq_u32 s{sW}, 1")
    a("s_cbranch_scc1 B_red_1")
    state = (list(a.vm), list(a.lg), list(a.hist), a.pos)
    for w in range(4):
        a.vm, a.lg, a.hist, a.pos = list(state[0]), list(state[1]), list(state[2]), state[3]
        a.raw(f"B_red_{w}:")
        for q in range(2):
            if q != w:
                a(f"ds_write_b128 v{vRW}, {vr(SV+4*q,4)} offset:{1024*q}")
        for k in range(8):
            a(f"v_cndmask_b32 v{SV+8+k}, v{KN+k}, v{KN+8+k}, {sr(sMB,2)}")
        for q in range(2, 4):
            if q != w:
                a(f"ds_write_b128 v{vRW}, {vr(SV+4*q,4)} offset:{1024*q}")
        a.wait_vm(tok["q1"])
        a.wait_lg()
        a("s_barrier")
        n = 0
        for w2 in range(4):
            if w2 != w:
                a(f"ds_read_b128 {vr(RQ+4*n,4)}, v{vRR} offset:{4096*w2}")
                n += 1
        for w2 in range(4):
            for h in range(2):
                a(f"ds_read_b32 v{RZ+2*w2+h}, v{vZR} offset:{5120*w2+256*h}")
        OQ = SV + 4 * w
        for n in range(3):
            a(f"v_pk_add_f32 {vr(OQ,2)}, {vr(OQ,2)}, {vr(RQ+4*n,2)}")
            a(f"v_pk_add_f32 {vr(OQ+2,2)}, {vr(OQ+2,2)}, {vr(RQ+4*n+2,2)}")
        a(f"v_cvt_pk_bf16_f32 v{PB}, v{OQ}, v{OQ+1}")
        a(f"v_cvt_pk_bf16_f32 v{PB+1}, v{OQ+2}, v{OQ+3}")
        if w < 3:
            a("s_branch B_red_done")
    a.raw("B_red_done:")
    for k in (0, 2):
        a(f"v_pk_add_f32 {vr(RZ+2*k,2)}, {vr(RZ+2*k,2)}, {vr(RZ+2*k+2,2)}")
    a(f"v_pk_add_f32 {vr(RZ,2)}, {vr(RZ,2)}, {vr(RZ+4,2)}")
    a(f"v_add_f32 v{PB+2}, v{RZ}, v{RZ+1}")
    a(f"global_store_dwordx3 v{vT12}, {vr(PB,3)}, {sr(sKS,2)} sc1")
    a(f"global_load_dword v{vFV}, v{vFC}, {sr(S_WS,2)} sc1")
    stamp(a, 4)

    AQ = 32
    g = gemm_groups(wq_base, vTK, vTKh, AQ, WF, False, range(8), True)
    merge(a, g, ([wopiece("o0", grp, m) for grp in (0, 1) for m in range(4)], lambda i: 1 if i % 4 == 1 else 0))
    flag_check(a, "B_fc", vFV, vFC, S_WS, sTAG, sCNT, sleep=1)
    KL = 128
    kloads = [f"global_load_dwordx3 {vr(KL+4*p,3)}, v{vT12}, {sr(sKV+2*(p//3),2)} offset:{(p%3-1)*KVP_STRIDE} sc1" for p in range(16)]
    for t in kloads[:8]:
        a(t)
    for k in range(8):
        a(f"v_cvt_pk_bf16_f32 v{64+k}, v{AQ+2*k}, v{AQ+2*k+1}")
    a(f"v_mfma_f32_32x32x16_bf16 {vr(P,16)}, {vr(WP,4)}, {vr(64,4)}, 0")
    a(f"v_mfma_f32_32x32x16_bf16 {vr(P,16)}, {vr(WP+4,4)}, {vr(68,4)}, {vr(P,16)}")
    for t in kloads[8:]:
        a(t)
    a("s_barrier")
    stamp(a, 5)
    a(f"v_and_b32 v{vT}, 15, v{vL}")
    a(f"v_lshlrev_b32 v{vT}, 2, v{vT}")
    a(f"v_mov_b32 v{vT3}, 0")
    a(f"ds_write_b32 v{vT}, v{vT3} offset:{ZERO}")
    sm = softmax_stream(P, E1, TS)
    chunks = [sm[i:i + 20] for i in range(0, len(sm), 20)]
    merge(a, chunks, ([wopiece("o1", grp, m) for grp in (2, 3) for m in range(4)], 1))
    PQ = (E1, E1 + 4, P, P + 4)
    stamp(a, 6)
    S4, UT = 48, 56

    def ksum(emit):
        for p in range(16):
            r = KL + 4 * p
            d = S4 if p == 0 else UT + 4 * (p & 1)
            emit(f"v_lshlrev_b32 v{d}, 16, v{r}")
            emit(f"v_and_b32 v{d+1}, 0xffff0000, v{r}")
            emit(f"v_lshlrev_b32 v{d+2}, 16, v{r+1}")
            emit(f"v_and_b32 v{d+3}, 0xffff0000, v{r+1}")
            if p == 0:
                emit(f"v_mov_b32 v{S4+4}, v{r+2}")
            else:
                emit(f"v_pk_add_f32 {vr(S4,2)}, {vr(S4,2)}, {vr(d,2)}")
                emit(f"v_pk_add_f32 {vr(S4+2,2)}, {vr(S4+2,2)}, {vr(d+2,2)}")
                emit(f"v_add_f32 v{S4+4}, v{S4+4}, v{r+2}")
        emit(f"v_add_f32 v{UT}, v{S4}, v{S4+1}")
        emit(f"v_add_f32 v{UT+1}, v{S4+2}, v{S4+3}")
        emit(f"v_add_f32 v{UT}, v{UT}, v{S4+4}")
        emit(f"v_cmp_u_f32 vcc, v{UT}, v{UT+1}")
    ksum(a)
    a("s_cbranch_vccnz B_kv_r")
    a.raw("B_kv_k:")
    st = ["B_kv_r:"] + ["    " + t for t in kloads]
    st += [f"    s_add_u32 s{sCNT}, s{sCNT}, 1", f"    s_cmp_gt_u32 s{sCNT}, {SPIN_MAX}", "    s_waitcnt vmcnt(0)",
           "    s_cbranch_scc1 B_kv_k"]
    ksum(lambda t: st.append("    " + t))
    st += ["    s_nop 1", "    s_cbranch_vccnz B_kv_r", "    s_branch B_kv_k"]
    Retry.stubs.append("\n".join(st))
    a(f"v_cvt_pk_bf16_f32 v{UT}, v{S4}, v{S4+1}")
    a(f"v_cvt_pk_bf16_f32 v{UT+1}, v{S4+2}, v{S4+3}")
    a(f"v_cvt_pk_bf16_f32 v{UT+2}, v{S4+4}, v{S4+4}")
    a(f"ds_write_b64 v{vKW}, {vr(UT,2)}")
    a(f"ds_write_b16 v{vZWr}, v{UT+2}")
    a.wait_vm()
    a.wait_lg()
    a("s_barrier")
    stamp(a, 7)
    FK, FZ, NUM, DEN = 128, 144, 64, 48
    for s in range(4):
        a(f"ds_read_b128 {vr(FZ+4*s,4)}, v{vZRd} offset:{16*s}")
        a(f"ds_read_b128 {vr(FK+4*s,4)}, v{vKR} offset:{16*s}")
    for s in range(4):
        a(f"v_mfma_f32_32x32x16_bf16 {vr(DEN,16)}, {vr(FZ+4*s,4)}, {vr(PQ[s],4)}, {vr(DEN,16) if s else 0}")
    for s in range(4):
        a(f"v_mfma_f32_32x32x16_bf16 {vr(NUM,16)}, {vr(FK+4*s,4)}, {vr(PQ[s],4)}, {vr(NUM,16) if s else 0}")
    vTOl, vTOh = 6, 10
    for ct in range(4):
        a(f"v_xor_b32 v{vTOl+ct}, {32*ct}, v{vTO}")
        a(f"v_add_u32 v{vTOh+ct}, {HI}, v{vTOl+ct}")
    a(f"v_add_f32 v{DEN}, 0x358637bd, v{DEN}")
    a(f"v_rcp_f32 v{DEN}, v{DEN}")
    OB = 88
    for k in range(8):
        a(f"v_pk_mul_f32 {vr(NUM+2*k,2)}, {vr(NUM+2*k,2)}, {vr(DEN,2)} op_sel_hi:[1,0]")
        a(f"v_cvt_pk_bf16_f32 v{OB+k}, v{NUM+2*k}, v{NUM+2*k+1}")
        if k == 3:
            a(f"global_store_dwordx4 v{vL16}, {vr(OB,4)}, {sr(sOS,2)} sc1")
    a(f"global_store_dwordx4 v{vL16}, {vr(OB+4,4)}, {sr(sOS,2)} offset:1024 sc1")
    stamp(a, 8)
    AO, WOF = 32, 48

    def wrd(h):
        o = []
        for ct in range(4):
            f = WOF + 16 * (h & 1) + 4 * ct
            o.append(tr(f, vTOl + ct, vTOh + ct, wo_base(h)))
            o.append(tr(f + 2, vTOl + ct, vTOh + ct, wo_base(h) + 512))
        return o
    for t in wrd(0):
        a(t)
    a.wait_vm()
    OF = 192
    oloads = [f"global_load_dwordx4 {vr(OF+4*h,4)}, v{vOLp}, {sr(sOL+2*(h//4),2)} offset:{(h%4-2)*2048} sc1" for h in range(16)]
    for t in oloads:
        a(t)
    stamp(a, 9)
    for h in range(16):
        checked(a, "B_o", h, oloads, OF + 4 * h, 4, vT, sCNT)
        nxt = wrd(h + 1) if h < 15 else []
        for ct in range(4):
            a(f"v_mfma_f32_16x16x32_bf16 {vr(AO+4*ct,4)}, {vr(WOF+16*(h&1)+4*ct,4)}, {vr(OF+4*h,4)}, {vr(AO+4*ct,4) if h else 0}")
            for t in nxt[2 * ct:2 * ct + 2]:
                a(t)
    a(f"v_mov_b32 v{vT}, {FL_EB}")
    a(f"s_or_b32 s{sT0}, s2, s{sW}")
    a(f"s_cmp_lg_u32 s{sT0}, 0")
    a("s_cbranch_scc1 B_noep")
    a.raw("    s_mov_b64 exec, 1")
    a.raw(f"    global_store_dword v{vT}, v{vTAG}, {sr(S_WS,2)} sc1")
    a.raw("    s_mov_b64 exec, -1")
    a.raw("B_noep:")
    for ct in range(4):
        a(f"v_cvt_pk_bf16_f32 v{48+2*ct}, v{AO+4*ct}, v{AO+4*ct+1}")
        a(f"v_cvt_pk_bf16_f32 v{49+2*ct}, v{AO+4*ct+2}, v{AO+4*ct+3}")
        a(f"ds_write_b64 v{vOW}, {vr(48+2*ct,2)} offset:{32*ct}")
    a.wait_lg()
    a(f"ds_read_b128 {vr(56,4)}, v{vOR}")
    a(f"ds_read_b128 {vr(60,4)}, v{vOR} offset:{8*144}")
    a(f"global_store_dwordx4 v{vOGp}, {vr(56,4)}, {sr(sOG,2)}")
    a(f"global_store_dwordx4 v{vOGp}, {vr(60,4)}, {sr(sOG+2,2)}")
    if Ctx.stamps:
        a.wait_vm()
    stamp(a, 10)
    write_stamps(a, 11, 64)
    a("s_endpgm")
    flush_stubs(a)
```

```python
from emit import *

KNAME = "concat_heads__ssm_conv_s4__linear_kernel_hedgehog__prompt_kernel"

S_U, S_ARE, S_AIM, S_BRE, S_BIM, S_CRE, S_CIM, S_LDT = 4, 6, 8, 10, 12, 14, 16, 18
S_DSK, S_X, S_W, S_WPHI, S_WO, S_OUT, S_DBG, S_WS = 20, 22, 24, 26, 28, 30, 32, 34

WS_UT = 0
WS_YT = 2 << 20
WS_O = 4 << 20
WS_KVP = 6 << 20
KVP_STRIDE = 3072
WS_FL = 7 << 20
FL_FU = WS_FL + 65536
FL_FY = WS_FL + 4096
FL_FK = WS_FL + 8192
FL_FO = WS_FL + 12288
FL_EB = WS_FL + 16384
FL_EA = WS_FL + 16384 + 128
FL_FC = WS_FL + 32768
WS_DBG = 8 << 20

TAG_MUL = 0x9E3779B1
TAG_ADD = 0x7F4A7C15
SPIN_MAX = 400000


class Ctx:
    stamps = False
    dump = None


def poll_flags_old(a, name, vaddr, vtmp, sbase, stag, scnt, sleep=1):
    a.wait_vm()
    a(f"s_mov_b32 s{scnt}, 0")
    a.label(f"{name}_spin")
    a.raw(f"    global_load_dword v{vtmp}, v{vaddr}, {sr(sbase, 2)} sc1")
    a.raw(f"    s_add_u32 s{scnt}, s{scnt}, 1")
    a.raw(f"    s_cmp_gt_u32 s{scnt}, {SPIN_MAX}")
    a.raw(f"    s_cbranch_scc1 {name}_done")
    a.raw(f"    s_waitcnt vmcnt(0)")
    a.raw(f"    v_cmp_ne_u32 vcc, s{stag}, v{vtmp}")
    a.raw(f"    s_nop 1")
    a.raw(f"    s_cbranch_vccz {name}_done")
    if sleep:
        a.raw(f"    s_sleep {sleep}")
    a.raw(f"    s_branch {name}_spin")
    a.raw(f"{name}_done:")
    a.raw(f"    s_waitcnt vmcnt(0)")
    a.forget_vm = True
    a.vm = []


def store_flag(a, vaddr, vtag, sbase):
    a("s_mov_b64 exec, 1")
    a(f"global_store_dword v{vaddr}, v{vtag}, {sr(sbase, 2)} sc1")
    a("s_mov_b64 exec, -1")


def stamp(a, idx, sbase=80):
    if Ctx.stamps:
        a(f"{'s_memtime' if Ctx.stamps == 'clk' else 's_memrealtime'} {sr(sbase + 2 * idx, 2)}")
        a.wait_lg()


def write_stamps(a, n, vt, sbase=80):
    if not Ctx.stamps:
        return
    a.wait_all()
    a(f"v_lshrrev_b32 v{vt}, 6, v0")
    a(f"v_lshlrev_b32 v{vt}, 6, v{vt}")
    a(f"s_lshl_b32 s78, s2, 8")
    a(f"s_add_u32 s78, s78, {WS_DBG}")
    a(f"v_add_u32 v{vt}, s78, v{vt}")
    a("s_mov_b64 exec, 1")
    for i in range(n):
        a(f"v_mov_b32 v{vt + 1}, s{sbase + 2 * i}")
        a(f"global_store_dword v{vt}, v{vt + 1}, {sr(S_WS, 2)} offset:{4 * i}")
    a("s_mov_b64 exec, -1")


def interleave(a, groups, fill, per):
    fill = list(fill)
    for g in groups:
        for t in g:
            a(t)
        for _ in range(per):
            if fill:
                a(fill.pop(0))
    return fill


class Retry:
    stubs = []


def checked(a, name, k, loads, regs, n, vtmp, scnt, sleep=0):
    if n == 4:
        a(f"v_max3_u32 v{vtmp}, v{regs}, v{regs+1}, v{regs+2}")
        a(f"v_max_u32 v{vtmp}, v{vtmp}, v{regs+3}")
    else:
        a(f"v_max3_u32 v{vtmp}, v{regs}, v{regs+1}, v{regs+2}")
    a(f"v_cmp_eq_u32 vcc, -1, v{vtmp}")
    a(f"s_cbranch_vccnz {name}_r{k}")
    a.raw(f"{name}_k{k}:")
    st = [f"{name}_r{k}:"]
    if sleep:
        st += [f"    s_sleep {sleep}"]
    st += ["    " + t for t in loads[k:]]
    st += [f"    s_add_u32 s{scnt}, s{scnt}, 1",
           f"    s_cmp_gt_u32 s{scnt}, {SPIN_MAX}",
           f"    s_waitcnt vmcnt(0)",
           f"    s_cbranch_scc1 {name}_k{k}",
           f"    v_max3_u32 v{vtmp}, v{regs}, v{regs+1}, v{regs+2}"]
    if n == 4:
        st += [f"    v_max_u32 v{vtmp}, v{vtmp}, v{regs+3}"]
    st += [f"    v_cmp_eq_u32 vcc, -1, v{vtmp}",
           f"    s_nop 1",
           f"    s_cbranch_vccnz {name}_r{k}",
           f"    s_branch {name}_k{k}"]
    Retry.stubs.append("\n".join(st))


def flag_check(a, name, vval, vaddr, sbase, stag, scnt, sleep=2):
    a(f"v_cmp_ne_u32 vcc, s{stag}, v{vval}")
    a(f"s_cbranch_vccnz {name}_r")
    a.raw(f"{name}_k:")
    Retry.stubs.append("\n".join([
        f"{name}_r:",
        f"    s_sleep {sleep}",
        f"    global_load_dword v{vval}, v{vaddr}, {sr(sbase,2)} sc1",
        f"    s_add_u32 s{scnt}, s{scnt}, 1",
        f"    s_cmp_gt_u32 s{scnt}, {SPIN_MAX}",
        "    s_waitcnt vmcnt(0)",
        f"    s_cbranch_scc1 {name}_k",
        f"    v_cmp_ne_u32 vcc, s{stag}, v{vval}",
        "    s_nop 1",
        f"    s_cbranch_vccnz {name}_r",
        f"    s_branch {name}_k"]))


def flush_stubs(a):
    for s in Retry.stubs:
        a.raw(s)
    Retry.stubs.clear()


def sbase(a, dst, src, soff):
    a(f"s_add_u32 s{dst}, s{src}, s{soff}")
    a(f"s_addc_u32 s{dst+1}, s{src+1}, 0")
```

```python
import sys
from gen_common import *
import gen_a
try:
    import gen_b
except ImportError:
    gen_b = None

HEADER = open("concat_heads__ssm_conv_s4__linear_kernel_hedgehog__prompt.s.ref").read().split("; @launch")[0]

def generate(do_a=True, do_b=True, prefetch=True):
    a = Asm()
    stamp(a, 0)
    a("s_cmp_ge_u32 s2, 512")
    a("s_cbranch_scc1 K_end")
    a("s_load_dwordx16 s[4:19], s[0:1], 0")
    a("s_load_dwordx16 s[20:35], s[0:1], 64")
    if prefetch:
        a("s_getpc_b64 s[36:37]")
        a("s_and_b32 s36, s36, 0xffffff00")
        a("s_lshr_b32 s38, s2, 3")
        a("s_lshl_b32 s38, s38, 9")
        a("v_lshrrev_b32 v1, 6, v0")
        a("v_lshl_add_u32 v1, v1, 7, s38")
        a("v_min_u32 v1, CODE_BYTES-4, v1")
        a("s_mov_b64 exec, 1")
        a("global_load_dword v255, v1, s[36:37]")
        a("s_mov_b64 exec, -1")
    a("s_cmp_ge_u32 s2, 256")
    a("s_cbranch_scc1 K_conv")
    lg, vm = list(a.lg), list(a.vm)
    if do_b and gen_b:
        gen_b.gen_b(a)
    else:
        a("s_endpgm")
    a.label("K_conv")
    a.lg, a.vm = list(lg), list(vm)
    if do_a:
        gen_a.gen_a(a)
    a.raw("K_end:")
    a.raw("    s_endpgm")
    a.raw("K_last:")
    import align
    body = '\n'.join(align.align(a.out)) + '\n' if getattr(Ctx, 'align', True) else a.text()
    txt = HEADER + f"""; @launch grid=(512,1,1) block=(256,1,1) lds=81920
.amdgcn_target "amdgcn-amd-amdhsa--gfx950"
.text
.globl {KNAME}
.p2align 8
.type {KNAME},@function
{KNAME}:
.set CODE_BYTES, K_last-{KNAME}
{body}
.section .rodata,"a"
.p2align 6
.amdhsa_kernel {KNAME}
  .amdhsa_next_free_vgpr 256
  .amdhsa_next_free_sgpr 102
  .amdhsa_accum_offset {getattr(Ctx,'accum',256)}
  .amdhsa_group_segment_fixed_size 0
  .amdhsa_kernarg_size 128
  .amdhsa_user_sgpr_count 2
  .amdhsa_user_sgpr_kernarg_segment_ptr 1
  .amdhsa_system_sgpr_workgroup_id_x 1
.end_amdhsa_kernel
"""
    return txt, a

if __name__ == "__main__":
    out = sys.argv[1]
    Ctx.stamps = "clk" if "clk" in sys.argv else ("stamps" in sys.argv)
    Ctx.rot = "norot" not in sys.argv
    Ctx.align = "noalign" not in sys.argv
    txt, a = generate(do_a="noa" not in sys.argv, do_b="nob" not in sys.argv, prefetch="nopf" not in sys.argv)
    open(out, "w").write(txt)
    print("instructions", a.count, "nop states", a.nops)
```

```python
import sys
from gen_common import *
import gen_a
try:
    import gen_b
except ImportError:
    gen_b = None

HEADER = open("concat_heads__ssm_conv_s4__linear_kernel_hedgehog__prompt.s.ref").read().split("; @launch")[0]

def generate(do_a=True, do_b=True, prefetch=True):
    a = Asm()
    stamp(a, 0)
    a("s_cmp_ge_u32 s2, 512")
    a("s_cbranch_scc1 K_end")
    a("s_load_dwordx16 s[4:19], s[0:1], 0")
    a("s_load_dwordx16 s[20:35], s[0:1], 64")
    if prefetch:
        a("s_getpc_b64 s[36:37]")
        a("s_and_b32 s36, s36, 0xffffff00")
        a("s_lshr_b32 s38, s2, 3")
        a("s_lshl_b32 s38, s38, 9")
        a("v_lshrrev_b32 v1, 6, v0")
        a("v_lshl_add_u32 v1, v1, 7, s38")
        a("v_min_u32 v1, CODE_BYTES-4, v1")
        a("s_mov_b64 exec, 1")
        a("global_load_dword v255, v1, s[36:37]")
        a("s_mov_b64 exec, -1")
    if getattr(Ctx, "touch", False):
        a.wait_lg()
        a("v_lshlrev_b32 v2, 15, v0")
        a("v_and_b32 v2, 0x3fffff, v2")
        a("global_load_dword v254, v2, s[30:31]")
        a("v_and_b32 v2, 0x7ffff, v2")
        a("global_load_dword v253, v2, s[28:29]")
        a("v_lshlrev_b32 v2, 15, v0")
        a("global_load_dword v252, v2, s[34:35]")
    a("s_cmp_ge_u32 s2, 256")
    a("s_cbranch_scc1 K_conv")
    lg, vm = list(a.lg), list(a.vm)
    if do_b and gen_b:
        gen_b.gen_b(a)
    else:
        a("s_endpgm")
    a.label("K_conv")
    a.lg, a.vm = list(lg), list(vm)
    if do_a:
        gen_a.gen_a(a)
    a.raw("K_end:")
    a.raw("    s_endpgm")
    a.raw("K_last:")
    import align
    body = '\n'.join(align.align(a.out)) + '\n' if getattr(Ctx, 'align', True) else a.text()
    txt = HEADER + f"""; @launch grid=(512,1,1) block=(256,1,1) lds=81920
.amdgcn_target "amdgcn-amd-amdhsa--gfx950"
.text
.globl {KNAME}
.p2align 8
.type {KNAME},@function
{KNAME}:
.set CODE_BYTES, K_last-{KNAME}
{body}
.section .rodata,"a"
.p2align 6
.amdhsa_kernel {KNAME}
  .amdhsa_next_free_vgpr 256
  .amdhsa_next_free_sgpr 102
  .amdhsa_accum_offset {getattr(Ctx,'accum',256)}
  .amdhsa_group_segment_fixed_size 0
  .amdhsa_kernarg_size 128
  .amdhsa_user_sgpr_count 2
  .amdhsa_user_sgpr_kernarg_segment_ptr 1
  .amdhsa_system_sgpr_workgroup_id_x 1
.end_amdhsa_kernel
"""
    return txt, a

if __name__ == "__main__":
    out = sys.argv[1]
    Ctx.stamps = "clk" if "clk" in sys.argv else ("stamps" in sys.argv)
    Ctx.rot = "norot" not in sys.argv
    Ctx.touch = "touch" in sys.argv
    Ctx.align = "noalign" not in sys.argv
    txt, a = generate(do_a="noa" not in sys.argv, do_b="nob" not in sys.argv, prefetch="nopf" not in sys.argv)
    open(out, "w").write(txt)
    print("instructions", a.count, "nop states", a.nops)
```

```python
from gen_common import *

CH = 32768
CS = 4160
RED = 16640
YRE = RED + 8192
UB = 0
UL = 4608
CB0 = 2 * UL

sA, sCG, sJ, sW, sC, sMH, sT0, sT1, sT2, sTAG, sCNT, sLD, sDS, sE = 36, 37, 38, 39, 40, 41, 42, 43, 44, 45, 46, 47, 48, 49
sPE, sPO, sK0, sK1, sUB, sCB = 50, 51, 52, 53, 54, 55
sM0, sM1, sM2 = 56, 58, 60
sK2 = 62


def cmul(a, d, x, y, t):
    a(f"v_pk_mul_f32 {vr(t,2)}, {vr(x,2)}, {vr(y,2)} op_sel:[1,1] op_sel_hi:[1,0] neg_lo:[0,1]")
    a(f"v_pk_fma_f32 {vr(d,2)}, {vr(x,2)}, {vr(y,2)}, {vr(t,2)} op_sel:[0,0,0] op_sel_hi:[0,1,1]")


def transpose(a, r0, r1, tmp, vw, vr0, vr1, dst, tb):
    for i in range(8):
        a(f"v_perm_b32 v{tmp+i}, v{r1+i//2}, v{r0+i//2}, s{sPO if i & 1 else sPE}")
        a(f"ds_write_b32 v{vw}, v{tmp+i} offset:{tb + i*128}")
    a.wait_lg()
    a("s_barrier")
    a(f"ds_read_b128 {vr(dst,4)}, v{vr0} offset:{tb}")
    a(f"ds_read_b128 {vr(dst+4,4)}, v{vr1} offset:{tb}")


def gen_a(a):
    vL, vM, vP = 1, 2, 3
    vTW, vTR0, vTR1 = 4, 5, 6
    vT, vT2, vT3, vTAG = 7, 8, 9, 10
    (vS0, vS1, vFU, vFP, vUG, vYC, vK, vK3, vKB, vUW, vUZ, vCA, vCB, vRW, vRR, vUS, vYW, vYR,
     vY0, vY1, vO0, vO1, vSR0, vSR1, vFV) = range(200, 225)
    vSW = 226
    M1 = 236
    ZR = 240
    a("s_setprio 2")
    a(f"s_sub_u32 s{sA}, s2, 256")
    a(f"s_and_b32 s{sCG}, s{sA}, 7")
    a(f"s_lshr_b32 s{sJ}, s{sA}, 3")
    a(f"v_lshrrev_b32 v{vT}, 6, v0")
    a(f"v_and_b32 v{vL}, 63, v0")
    a(f"v_readfirstlane_b32 s{sW}, v{vT}")
    a(f"v_lshrrev_b32 v{vM}, 3, v{vL}")
    a(f"v_and_b32 v{vP}, 7, v{vL}")
    a(f"s_lshl_b32 s{sT0}, s{sJ}, 16")
    a(f"s_lshl_b32 s{sT1}, s{sW}, 14")
    a(f"s_add_u32 s{sT0}, s{sT0}, s{sT1}")
    a(f"s_lshl_b32 s{sT1}, s{sCG}, 7")
    a(f"s_add_u32 s{sT0}, s{sT0}, s{sT1}")
    a(f"v_lshlrev_b32 v{vT3}, 11, v{vM}")
    a(f"v_lshl_add_u32 v{vT3}, v{vP}, 4, v{vT3}")
    a(f"v_add_u32 v{vT}, s{sT0}, v{vT3}")
    a(f"s_lshl_b32 s{sA}, s{sCG}, 6")
    a(f"s_lshl_b32 s{sT2}, s{sJ}, 1")
    a(f"s_add_u32 s{sA}, s{sA}, s{sT2}")
    a(f"s_lshl_b32 s{sT2}, s{sA}, 1")
    a(f"s_lshl_b32 s{sT0}, s{sA}, 8")
    a(f"s_lshl_b32 s{sC}, s{sW}, 7")
    a(f"s_add_u32 s{sT0}, s{sT0}, s{sC}")
    a(f"v_lshl_add_u32 v{vT2}, v{vL}, 1, s{sT0}")
    a(f"s_add_u32 s{sT1}, s{sT1}, {FL_EA}")
    fine(a, 1, 1)
    a.wait_lg()
    fine(a, 1, 2)
    R0, R1 = 12, 16
    a(f"global_load_dwordx4 {vr(R0,4)}, v{vT}, {sr(S_U,2)}")
    a(f"global_load_dwordx4 {vr(R1,4)}, v{vT}, {sr(S_U,2)} offset:1024")
    a(f"s_load_dword s{sE}, {sr(S_WS,2)}, s{sT1}")
    a(f"s_load_dword s{sLD}, {sr(S_LDT,2)}, s{sT2}")
    a(f"s_load_dword s{sDS}, {sr(S_DSK,2)}, s{sT2}")
    PAR = 32
    for k, s in enumerate((S_ARE, S_AIM, S_BRE, S_BIM, S_CRE, S_CIM)):
        a(f"global_load_ushort v{PAR+k}, v{vT2}, {sr(s,2)}")
    fine(a, 1, 3)
    a(f"s_lshr_b32 s{sC}, s{sW}, 1")
    a(f"s_and_b32 s{sMH}, s{sW}, 1")
    a(f"s_mul_i32 s{sUB}, s{sC}, {UL}")
    a(f"s_lshl_b32 s{sCB}, s{sC}, 15")
    a(f"s_add_u32 s{sCB}, s{sCB}, {CB0}")
    a(f"s_lshl_b32 s{sT0}, s{sJ}, 17")
    a(f"s_lshl_b32 s{sT1}, s{sW}, 15")
    a(f"s_add_u32 s{sT0}, s{sT0}, s{sT1}")
    a(f"s_lshl_b32 s{sT1}, s{sCG}, 7")
    a(f"s_add_u32 s{sT0}, s{sT0}, s{sT1}")
    a(f"v_add_u32 v{vO0}, s{sT0}, v{vT3}")
    a(f"v_add_u32 v{vO1}, 0x4000, v{vO0}")
    a(f"s_mov_b32 s{sPE}, 0x05040100")
    a(f"s_mov_b32 s{sPO}, 0x07060302")
    a(f"v_lshrrev_b32 v{vT}, 2, v{vM}")
    a(f"s_lshl_b32 s{sT0}, s{sW}, 1")
    a(f"v_add_u32 v{vT}, s{sT0}, v{vT}")
    a(f"v_xor_b32 v{vT}, v{vT}, v{vP}")
    a(f"v_lshlrev_b32 v{vT}, 4, v{vT}")
    a(f"v_lshl_add_u32 v{vT}, v{vP}, 10, v{vT}")
    a(f"v_and_b32 v{vT3}, 3, v{vM}")
    a(f"v_lshl_add_u32 v{vTW}, v{vT3}, 2, v{vT}")
    a(f"v_xor_b32 v{vT}, s{sT0}, v{vP}")
    a(f"v_lshlrev_b32 v{vT}, 4, v{vT}")
    a(f"v_lshl_add_u32 v{vT}, v{vM}, 7, v{vT}")
    a(f"s_lshl_b32 s{sT1}, s{sW}, 11")
    a(f"v_add_u32 v{vTR0}, s{sT1}, v{vT}")
    a(f"v_xor_b32 v{vTR1}, 16, v{vTR0}")
    a(f"v_add_u32 v{vTR1}, 1024, v{vTR1}")
    a(f"s_lshl_b32 s{sT0}, s{sCG}, 18")
    a(f"s_lshl_b32 s{sT1}, s{sW}, 16")
    a(f"s_add_u32 s{sT0}, s{sT0}, s{sT1}")
    a(f"s_lshl_b32 s{sT1}, s{sJ}, 7")
    a(f"s_add_u32 s{sT0}, s{sT0}, s{sT1}")
    a(f"v_lshlrev_b32 v{vT}, 4, v{vP}")
    a(f"v_add_u32 v{vT}, s{sT0}, v{vT}")
    a(f"v_lshl_add_u32 v{vS0}, v{vM}, 12, v{vT}")
    a(f"v_add_u32 v{vS1}, 0x8000, v{vS0}")
    a(f"v_lshl_add_u32 v{vY0}, v{vM}, 13, v{vT}")
    a(f"v_add_u32 v{vY0}, {WS_YT}, v{vY0}")
    a(f"v_add_u32 v{vY1}, 0x1000, v{vY0}")
    a(f"s_lshl_b32 s{sT0}, s{sA}, 12")
    a(f"s_lshl_b32 s{sT1}, s{sW}, 11")
    a(f"s_add_u32 s{sT1}, s{sT0}, s{sT1}")
    a(f"v_lshl_add_u32 v{vUG}, v{vL}, 4, s{sT1}")
    a(f"s_lshl_b32 s{sT1}, s{sW}, 10")
    a(f"s_add_u32 s{sT0}, s{sT0}, s{sT1}")
    a(f"s_add_u32 s{sT0}, s{sT0}, {WS_YT + 2048}")
    a(f"v_lshl_add_u32 v{vYC}, v{vL}, 4, s{sT0}")
    a(f"s_lshl_b32 s{sT0}, s{sCG}, 14")
    a(f"s_add_u32 s{sT0}, s{sT0}, {FL_FU}")
    a(f"s_lshl_b32 s{sT1}, s{sW}, 12")
    a(f"s_lshl_b32 s{sT2}, s{sJ}, 7")
    a(f"s_add_u32 s{sT1}, s{sT1}, s{sT2}")
    a(f"s_add_u32 s{sT1}, s{sT1}, s{sT0}")
    a(f"v_mov_b32 v{vFU}, s{sT1}")
    a(f"s_lshr_b32 s{sT1}, s{sJ}, 3")
    a(f"s_lshl_b32 s{sT1}, s{sT1}, 12")
    a(f"s_add_u32 s{sT0}, s{sT0}, s{sT1}")
    a(f"s_lshl_b32 s{sT1}, s{sW}, 10")
    a(f"s_add_u32 s{sT0}, s{sT0}, s{sT1}")
    a(f"v_lshl_add_u32 v{vFP}, v{vP}, 7, s{sT0}")
    for k in range(4):
        a(f"v_mov_b32 v{M1+k}, -1")
        a(f"v_mov_b32 v{ZR+k}, 0")
    fine(a, 1, 4)
    a.wait_lg()
    fine(a, 1, 5)
    if getattr(Ctx, "grp", 0) == 1:
        a("v_mov_b32 v250, v12")
        a("v_mov_b32 v250, v16")
        fine(a, 1, 6)
    a(f"s_mul_i32 s{sTAG}, s{sE}, {TAG_MUL}")
    a(f"s_add_u32 s{sTAG}, s{sTAG}, {TAG_ADD}")
    a(f"v_mov_b32 v{vTAG}, s{sTAG}")
    a(f"s_mov_b32 s{sCNT}, 0")
    stamp(a, 1)
    transpose(a, R0, R1, 20, vTW, vTR0, vTR1, 12, UB)
    a(f"global_store_dwordx4 v{vS0}, {vr(12,4)}, {sr(S_WS,2)} sc1")
    a(f"global_store_dwordx4 v{vS1}, {vr(16,4)}, {sr(S_WS,2)} sc1")
    a("s_setprio 0")
    fine(a, 1, 7)
    stamp(a, 2)

    a(f"s_lshl_b32 s{sT0}, s{sC}, 4")
    a(f"s_lshr_b32 s{sLD}, s{sLD}, s{sT0}")
    a(f"s_lshl_b32 s{sLD}, s{sLD}, 16")
    a(f"s_lshr_b32 s{sDS}, s{sDS}, s{sT0}")
    a(f"s_lshl_b32 s{sDS}, s{sDS}, 16")
    a(f"s_mov_b32 s{sK0}, 0x3fb8aa3b")
    a(f"s_mov_b32 s{sK1}, 0x32a57060")
    a(f"s_mov_b32 s{sK2}, 0x3f317218")
    vDT, vA, vB_ = 20, 21, 22
    a(f"v_mov_b32 v{vT3}, s{sLD}")
    a(f"v_mul_f32 v{vT}, s{sK0}, v{vT3}")
    a(f"v_fma_f32 v{vT2}, v{vT3}, s{sK0}, -v{vT}")
    a(f"v_fma_f32 v{vT2}, v{vT3}, s{sK1}, v{vT2}")
    a(f"v_exp_f32 v{vT}, v{vT}")
    a(f"v_mul_f32 v{vT2}, s{sK2}, v{vT2}")
    a(f"v_fma_f32 v{vT}, v{vT}, v{vT2}, v{vT}")
    a(f"v_cvt_pk_bf16_f32 v{vT}, v{vT}, v{vT}")
    a(f"v_lshlrev_b32 v{vDT}, 16, v{vT}")
    for k in range(6):
        a(f"v_lshlrev_b32 v{PAR+k}, 16, v{PAR+k}")
    a(f"v_mul_f32 v{vA}, v{vDT}, v{PAR}")
    a(f"v_mul_f32 v{vB_}, v{vDT}, v{PAR+1}")
    a(f"v_mul_f32 v{PAR+2}, v{vDT}, v{PAR+2}")
    a(f"v_mul_f32 v{PAR+3}, v{vDT}, v{PAR+3}")
    a(f"v_mul_f32 v{vA}, s{sK0}, v{vA}")
    a(f"v_mul_f32 v{vB_}, 0.15915494, v{vB_}")
    Z1, W8, Z256 = 40, 42, 44
    E3, P3 = 23, 46
    for k, tau in enumerate((1.0, 8.0, 256.0)):
        if k == 0:
            a(f"v_exp_f32 v{E3}, v{vA}")
            a(f"v_fract_f32 v{P3}, v{vB_}")
        else:
            lit = {8.0: "0x41000000", 256.0: "0x43800000"}[tau]
            a(f"v_mul_f32 v{E3+k}, {lit}, v{vA}")
            a(f"v_mul_f32 v{P3+k}, {lit}, v{vB_}")
            a(f"v_exp_f32 v{E3+k}, v{E3+k}")
            a(f"v_fract_f32 v{P3+k}, v{P3+k}")
    for k, z in enumerate((Z1, W8, Z256)):
        a(f"v_cos_f32 v{z}, v{P3+k}")
        a(f"v_sin_f32 v{z+1}, v{P3+k}")
    for k, z in enumerate((Z1, W8, Z256)):
        a(f"v_mul_f32 v{z}, v{E3+k}, v{z}")
        if z == W8:
            a(f"v_mul_f32_e64 v{z+1}, -v{E3+k}, v{z+1}")
        else:
            a(f"v_mul_f32 v{z+1}, v{E3+k}, v{z+1}")
    XB = 50
    XR_, XI, YR_, YI = 112, 128, 144, 160
    xreg = {}
    slot = {}
    for t in range(11):
        slot[t] = (0, t)
    for k, o in enumerate((0, 2, 4, 6, 8, 10)):
        slot[256 + o] = (1, k)
    for k, o in enumerate((0, 4, 8)):
        slot[512 + o] = (1, 6 + k)
        slot[768 + o] = (1, 9 + k)
    for B, h, r in ((1024, 0, 12), (1280, 0, 14), (1536, 1, 12), (1792, 1, 14)):
        slot[B] = (h, r)
        slot[B + 8] = (h, r + 1)
    col = {key: 8 * (r >> 2) + 4 * h + (r & 3) for key, (h, r) in slot.items()}
    bycol = {c: key for key, c in col.items()}
    xops = [(0, None, None)]
    xops += [(t, t - 1, Z1) for t in range(1, 11)]
    xops += [(256 + o, o, Z256) for o in (0, 2, 4, 6, 8, 10)]
    xops += [(512 + o, 256 + o, Z256) for o in (0, 4, 8)]
    xops += [(768 + o, 512 + o, Z256) for o in (0, 4, 8)]
    for B in (1024, 1280, 1536, 1792):
        xops += [(B + o, B - 256 + o, Z256) for o in (0, 8)]
    TX, TY, YA, YB = 26, 28, 30, 38
    a(f"v_cvt_pk_bf16_f32 v{YR_}, 1.0, v{W8}")
    a(f"v_cvt_pk_bf16_f32 v{YI}, 0, v{W8+1}")
    ycur = W8
    late = []
    late += [f"v_and_b32 v{vT}, 31, v{vL}", f"v_lshrrev_b32 v{vT2}, 5, v{vL}",
             f"v_lshlrev_b32 v{vK}, 4, v{vT}", f"s_add_u32 s{sT0}, s{sCB}, {4112 - 3584}",
             f"v_sub_u32 v{vK}, s{sT0}, v{vK}", f"v_lshlrev_b32 v{vT}, 10, v{vT2}",
             f"v_sub_u32 v{vK3}, v{vK}, v{vT}", f"v_mov_b32 v{vKB}, s{sCB}"]
    for n in range(31):
        key, src, z = xops[n]
        d = XB + 2 * n
        xreg[key] = d
        if src is None:
            cmul(a, d, PAR + 4, PAR + 2, TX)
        else:
            cmul(a, d, xreg[src], z, TX)
        if n < 30:
            yn = YA if n % 2 == 0 else YB
            cmul(a, yn, ycur, W8, TY)
            ycur = yn
        c = col[key]
        mate = bycol.get(c ^ 1)
        if mate is None or mate in xreg:
            lo = xreg[bycol[c & ~1]]
            hi = xreg[bycol.get(c | 1, key)]
            a(f"v_cvt_pk_bf16_f32 v{XR_+c//2}, v{lo}, v{hi}")
            a(f"v_cvt_pk_bf16_f32 v{XI+c//2}, v{lo+1}, v{hi+1}")
        if n < 30 and n % 2 == 1:
            m = (n + 2) // 2
            a(f"v_cvt_pk_bf16_f32 v{YR_+m}, v{YA}, v{YB}")
            a(f"v_cvt_pk_bf16_f32 v{YI+m}, v{YA+1}, v{YB+1}")
        if n == 20:
            a.comment("publish this wave's part of the transposed u tile")
            fine(a, 1, 8)
            a.wait_vm()
            fine(a, 1, 9)
            store_flag(a, vFU, vTAG, S_WS)
    assert XB + 62 <= XR_
    a(f"s_lshl_b32 s{sT0}, s{sMH}, 13")
    a(f"s_add_u32 s{sT0}, s{sT0}, s{sCB}")
    a(f"v_lshlrev_b32 v{vT}, 4, v{vP}")
    a(f"v_lshl_add_u32 v{vT}, v{vL}, 7, v{vT}")
    a(f"v_add_u32 v{vSW}, s{sT0}, v{vT}")
    for q in range(1, 8):
        a(f"v_xor_b32 v{vSW+q}, {16*q}, v{vSW}")
    for q in range(4):
        a(f"ds_write_b128 v{vSW+q}, {vr(YR_+4*q,4)} offset:16384")
        a(f"ds_write_b128 v{vSW+4+q}, {vr(YI+4*q,4)} offset:16384")
    for q in range(4):
        a(f"ds_write_b128 v{vSW+q}, {vr(XR_+4*q,4)}")
        a(f"ds_write_b128 v{vSW+4+q}, {vr(XI+4*q,4)}")
    stamp(a, 3)
    fine(a, 1, 10)
    for t in late:
        a(t)
    a(f"v_bfe_u32 v{vT}, v{vL}, 3, 1")
    a(f"v_lshl_add_u32 v{vT}, v{vT2}, 2, v{vT}")
    a(f"v_bfe_u32 v{vT3}, v{vL}, 2, 1")
    a(f"v_bfe_u32 v20, v{vL}, 4, 1")
    a(f"v_lshl_add_u32 v{vT3}, v{vT3}, 1, v20")
    a(f"v_bfe_u32 v20, v{vL}, 1, 1")
    a(f"v_lshl_add_u32 v{vT3}, v{vT3}, 1, v20")
    a(f"v_xor_b32 v{vT3}, v{vT3}, v{vT}")
    a(f"v_lshlrev_b32 v{vT3}, 4, v{vT3}")
    a(f"v_lshl_add_u32 v{vT3}, v{vT}, 7, v{vT3}")
    a(f"v_and_b32 v20, 1, v{vL}")
    a(f"v_lshl_add_u32 v{vT3}, v20, 3, v{vT3}")
    a(f"v_add_u32 v{vSR0}, s{sCB}, v{vT3}")
    a(f"v_xor_b32 v{vSR1}, 32, v{vSR0}")
    a(f"v_add_u32 v{vSR1}, 256, v{vSR1}")
    a(f"global_load_dword v{vFV}, v{vFP}, {sr(S_WS,2)} sc1")
    a.wait_lg()
    a("s_barrier")
    D = 32
    FA, FB = 48, 80
    NPF = 4
    vN, vG = 20, 21
    fill = [
        f"v_and_b32 v{vN}, 15, v{vL}", f"v_lshrrev_b32 v{vG}, 4, v{vL}",
        f"v_sub_u32 v{vT}, 2, v{vN}", f"v_and_b32 v{vT}, 3, v{vT}",
        f"v_lshlrev_b32 v{vT2}, 3, v{vG}", f"v_sub_u32 v{vT2}, v{vT2}, v{vN}",
        f"v_sub_u32 v{vT2}, v{vT2}, v{vT}", f"v_mul_u32_u24 v{vT}, {CS}, v{vT}",
        f"s_lshl_b32 s{sT0}, s{sMH}, 8", f"s_sub_u32 s{sT1}, s{sCB}, s{sT0}",
        f"s_add_u32 s{sT1}, s{sT1}, {2*(2050-1792-96)}",
        f"v_lshl_add_u32 v{vCA}, v{vT2}, 1, v{vT}", f"v_add_u32 v{vCA}, s{sT1}, v{vCA}",
        f"s_sub_u32 s{sT1}, s{sUB}, s{sT0}", f"s_add_u32 s{sT1}, s{sT1}, {2*(256-16-96)}",
        f"v_lshlrev_b32 v{vT}, 5, v{vN}",
        f"v_lshl_add_u32 v{vCB}, v{vG}, 4, v{vT}", f"v_add_u32 v{vCB}, s{sT1}, v{vCB}",
        f"s_add_u32 s{sT1}, s{sUB}, s{sT0}", f"v_lshl_add_u32 v{vUZ}, v{vL}, 2, s{sT1}",
        f"s_lshl_b32 s{sT0}, s{sMH}, 11", f"s_add_u32 s{sT1}, s{sUB}, s{sT0}",
        f"v_lshl_add_u32 v{vUW}, v{vL}, 4, s{sT1}",
        f"v_lshl_add_u32 v{vT}, v{vG}, 3, v{vT}",
        f"v_add_u32 v{vUS}, s{sT1}, v{vT}",
        f"s_add_u32 s{sT1}, s{sCB}, s{sT0}", f"s_add_u32 s{sT1}, s{sT1}, {YRE}",
        f"v_add_u32 v{vYW}, s{sT1}, v{vT}", f"v_lshl_add_u32 v{vYR}, v{vL}, 4, s{sT1}",
        f"s_lshl_b32 s{sT0}, s{sMH}, 12", f"s_add_u32 s{sT1}, s{sCB}, {RED}",
        f"s_add_u32 s{sT2}, s{sT1}, s{sT0}", f"v_lshl_add_u32 v{vRW}, v{vL}, 4, s{sT2}",
        f"s_xor_b32 s{sT0}, s{sT0}, 4096", f"s_add_u32 s{sT2}, s{sT1}, s{sT0}",
        f"v_lshl_add_u32 v{vRR}, v{vL}, 4, s{sT2}",
        f"s_mov_b32 s{sM0}, 0x80000000", f"s_mov_b32 s{sM0+1}, 0", f"s_mov_b32 s{sM1}, 0",
        f"s_mov_b32 s{sM1+1}, 0x80000000", f"s_mov_b32 s{sM2}, 0xaaaaaaaa", f"s_mov_b32 s{sM2+1}, 0xaaaaaaaa",
    ]
    for st in range(16 + NPF):
        if st < 16:
            fa, fb = FA + 4 * (st % 8), FB + 4 * (st % 8)
            a(f"ds_read_b64_tr_b16 {vr(fa,2)}, v{vSR0} offset:{1024*st}")
            a(f"ds_read_b64_tr_b16 {vr(fa+2,2)}, v{vSR1} offset:{1024*st}")
            a(f"ds_read_b64_tr_b16 {vr(fb,2)}, v{vSR0} offset:{16384+1024*st}")
            a(f"ds_read_b64_tr_b16 {vr(fb+2,2)}, v{vSR1} offset:{16384+1024*st}")
        if st >= NPF:
            k = st - NPF
            a(f"v_mfma_f32_32x32x16_bf16 {vr(D,16)}, {vr(FA+4*(k%8),4)}, {vr(FB+4*(k%8),4)}, {vr(D,16) if k else 0}")
            for _ in range(3):
                if fill:
                    a(fill.pop(0))
    for t in fill:
        a(t)
    stamp(a, 4)
    flag_check(a, "A_fu", vFV, vFP, S_WS, sTAG, sCNT, sleep=3)
    if Ctx.stamps:
        a(f"s_mov_b32 s26, s{sCNT}")
    a("s_barrier")
    UR = 12
    fine(a, 2, 1)
    a(f"global_load_dwordx4 {vr(UR,4)}, v{vUG}, {sr(S_WS,2)} sc1")
    a(f"global_load_dwordx4 {vr(UR+4,4)}, v{vUG}, {sr(S_WS,2)} offset:1024 sc1")
    a(f"global_store_dwordx4 v{vYC}, {vr(M1,4)}, {sr(S_WS,2)} offset:-2048 sc1")
    a(f"global_store_dwordx4 v{vYC}, {vr(M1,4)}, {sr(S_WS,2)} offset:2048 sc1")
    stamp(a, 5)
    fine(a, 2, 2)
    TA, TB_ = 48, 49
    a(f"v_cndmask_b32 v{D+9}, v{D+9}, v{D+8}, {sr(sM0,2)}")
    a(f"v_cndmask_b32 v{D+5}, v{D+5}, v{D+4}, {sr(sM1,2)}")
    a(f"v_cndmask_b32 v{TA}, v{D+12}, v{D+13}, {sr(sM2,2)}")
    a(f"v_cndmask_b32 v{TB_}, v{D+14}, v{D+15}, {sr(sM2,2)}")
    m1 = [0, 0, 1, 2, 2, 2, 3, 4, 4, 4, 5]
    m2 = [0, 0, 0, 1, 1, 1, 2, 2, 2, 2, 2]
    types = [
        (lambda o: D + 12 if o < 4 else (TA if o == 4 else D + 13), 1024, vK3, "all"),
        (lambda o: D + 14 if o < 4 else (TB_ if o == 4 else D + 15), 1280, vK3, "all"),
        (lambda o: D + m1[o], 256, vK, "hi"),
        (lambda o: D + 6 + m2[o], 512, vK, "hi"),
        (lambda o: D + 9 + m2[o], 768, vK, "hi"),
        (lambda o: D + o, 0, vK, "lo"),
    ]
    CB = 52
    a(f"ds_write_b32 v{vUZ}, v{ZR}")
    a(f"s_cmp_eq_u32 s{sMH}, 1")
    a.settle()
    a("s_cbranch_scc1 A_exp1")
    vm_save, lg_save = list(a.vm), list(a.lg)
    for mh in range(2):
        if mh == 1:
            a("s_branch A_exp_done")
            a.label("A_exp1")
            a.vm, a.lg = list(vm_save), list(lg_save)
        n = 0
        cur = "all"
        for ti, (src, B, va, ex) in enumerate(types):
            if ex != cur:
                cur = ex
                a(f"s_mov_b32 exec_lo, {0 if ex == 'hi' else -1}")
                a(f"s_mov_b32 exec_hi, {-1 if ex == 'hi' else 0}")
            for s in (2 * mh, 2 * mh + 1):
                c = CB + 4 * n
                n += 1
                for m in range(4):
                    a(f"v_cvt_pk_bf16_f32 v{c+m}, v{src(10-s-2*m)}, v{src(9-s-2*m)}")
                a(f"ds_write_b128 v{va}, {vr(c,4)} offset:{s*CS + 3584 - 2*B}")
        a("s_mov_b64 exec, 1")
        for s in (2 * mh, 2 * mh + 1):
            a(f"ds_write_b128 v{vKB}, {vr(ZR,4)} offset:{s*CS + 4144}")
            if s == 3:
                a(f"ds_write_b128 v{vKB}, {vr(ZR,4)} offset:{s*CS + 4128}")
                continue
            c = CB + 4 * n
            n += 1
            for m in range(4):
                lo, hi = 2 - s - 2 * m, 1 - s - 2 * m
                if lo < 0:
                    a(f"v_mov_b32 v{c+m}, 0")
                else:
                    a(f"v_cvt_pk_bf16_f32 v{c+m}, v{D+lo}, {('v%d' % (D+hi)) if hi >= 0 else '0'}")
            a(f"ds_write_b128 v{vKB}, {vr(c,4)} offset:{s*CS + 4128}")
        a("s_mov_b64 exec, -1")
        a.lg = a.lg + [dict(id=-1, regs=set(), smem=True)]
    a.label("A_exp_done")
    fine(a, 2, 3)
    a(f"ds_write_b128 v{vUW}, {vr(UR,4)} offset:512")
    a(f"ds_write_b128 v{vUW}, {vr(UR+4,4)} offset:1536")
    fine(a, 2, 4)
    a(f"s_lshl_b32 s{sT1}, s{sCG}, 7")
    a(f"s_add_u32 s{sT1}, s{sT1}, {FL_EA}")
    a(f"v_mov_b32 v{vT3}, s{sT1}")
    a(f"s_or_b32 s{sT0}, s{sJ}, s{sW}")
    a(f"s_cmp_lg_u32 s{sT0}, 0")
    a("s_cbranch_scc1 A_noep")
    a.raw("    s_mov_b64 exec, 1")
    a.raw(f"    global_store_dword v{vT3}, v{vTAG}, {sr(S_WS,2)} sc1")
    a.raw("    s_mov_b64 exec, -1")
    a.raw("A_noep:")
    a.wait_lg()
    fine(a, 2, 5)
    a("s_barrier")
    fine(a, 2, 6)
    stamp(a, 6)
    ACC = 32
    BUF = (64, 128)

    def reads(rl):
        b = BUF[rl & 1]
        out = []
        for k in range(8):
            out.append(f"ds_read_b128 {vr(b+32+4*k,4)}, v{vCB} offset:{512*k + 64*(3-rl)}")
            o = 512 * (7 - k) + 64 * (3 - rl)
            out.append(f"ds_read_b64 {vr(b+4*k,2)}, v{vCA} offset:{o}")
            out.append(f"ds_read_b64 {vr(b+4*k+2,2)}, v{vCA} offset:{o+8}")
        return out
    pairs = sorted([(mm, p) for mm in range(8) for p in range(8) if mm + p <= 7], key=lambda x: (max(x), x[0] + x[1]))
    first = reads(0)
    for r in first[:12]:
        a(r)
    first = first[12:]
    started = set()
    US = 192
    for rl in range(4):
        b = BUF[rl & 1]
        nxt = reads(rl + 1) if rl < 3 else [f"ds_read_b64 {vr(US+2*m,2)}, v{vUS} offset:{512 + 512*m}" for m in range(4)]
        if rl == 0:
            nxt = first + nxt
        for n, (mm, p) in enumerate(pairs):
            i = mm + p
            cin = vr(ACC + 4 * i, 4) if i in started else "0"
            started.add(i)
            a(f"v_mfma_f32_16x16x32_bf16 {vr(ACC+4*i,4)}, {vr(b+4*mm,4)}, {vr(b+32+4*p,4)}, {cin}")
            if nxt and (rl == 0 or n % 3 != 2):
                a(nxt.pop(0))
        assert not nxt
        if rl == 0:
            a.comment("this wave's y rows are cleared: publish")
            a.vm = []
            a.raw("    s_waitcnt vmcnt(0)")
            a("s_mov_b64 exec, 1")
            a(f"global_store_dword v{vFU}, v{vTAG}, {sr(S_WS,2)} offset:64 sc1")
            a("s_mov_b64 exec, -1")
        if rl == 2:
            a(f"global_load_dword v{vFV}, v{vFP}, {sr(S_WS,2)} offset:64 sc1")
    stamp(a, 7)
    UX = 112
    for m in range(4):
        for e in range(4):
            src = US + 2 * m + (e >> 1)
            if e & 1:
                a(f"v_and_b32 v{UX+4*m+e}, 0xffff0000, v{src}")
            else:
                a(f"v_lshlrev_b32 v{UX+4*m+e}, 16, v{src}")
    a(f"v_add_u32 v{vFP}, 64, v{vFP}")
    flag_check(a, "A_fy", vFV, vFP, S_WS, sTAG, sCNT, sleep=2)
    KEEP = 96
    a(f"s_cmp_eq_u32 s{sMH}, 1")
    a.settle()
    a("s_cbranch_scc1 A_red1")
    lg_save = list(a.lg)
    for mh in range(2):
        if mh == 1:
            a("s_branch A_red_done")
            a.label("A_red1")
            a.lg = list(lg_save)
        send = ACC + 16 * (1 - mh)
        keep = ACC + 16 * mh
        for m in range(4):
            a(f"ds_write_b128 v{vRW}, {vr(send+4*m,4)} offset:{1024*m}")
        for k in range(16):
            a(f"v_fma_f32 v{KEEP+k}, v{UX+k}, s{sDS}, v{keep+k}")
        a.wait_lg()
    a.label("A_red_done")
    a("s_barrier")
    RR = 72
    for m in range(4):
        a(f"ds_read_b128 {vr(RR+4*m,4)}, v{vRR} offset:{1024*m}")
    a(f"v_add_u32 v{vUG}, {WS_YT}, v{vUG}")
    for m in range(4):
        a(f"v_pk_add_f32 {vr(KEEP+4*m,2)}, {vr(KEEP+4*m,2)}, {vr(RR+4*m,2)}")
        a(f"v_pk_add_f32 {vr(KEEP+4*m+2,2)}, {vr(KEEP+4*m+2,2)}, {vr(RR+4*m+2,2)}")
        a(f"v_cvt_pk_bf16_f32 v{US+2*m}, v{KEEP+4*m}, v{KEEP+4*m+1}")
        a(f"v_cvt_pk_bf16_f32 v{US+2*m+1}, v{KEEP+4*m+2}, v{KEEP+4*m+3}")
        a(f"ds_write_b64 v{vYW}, {vr(US+2*m,2)} offset:{512*m}")
    a.wait_lg()
    a(f"ds_read_b128 {vr(RR,4)}, v{vYR}")
    a(f"ds_read_b128 {vr(RR+4,4)}, v{vYR} offset:1024")
    a(f"global_store_dwordx4 v{vUG}, {vr(RR,4)}, {sr(S_WS,2)} sc1")
    a(f"global_store_dwordx4 v{vUG}, {vr(RR+4,4)}, {sr(S_WS,2)} offset:1024 sc1")
    stamp(a, 8)
    a.vm = []
    a.raw("    s_waitcnt vmcnt(0)")
    yl = [f"global_load_dwordx4 {vr(32,4)}, v{vY0}, {sr(S_WS,2)} sc1",
          f"global_load_dwordx4 {vr(36,4)}, v{vY1}, {sr(S_WS,2)} sc1"]
    for t in yl:
        a(t)
    checked(a, "A_y", 0, yl, 32, 4, vT, sCNT, sleep=2)
    checked(a, "A_y", 1, yl, 36, 4, vT, sCNT, sleep=2)
    stamp(a, 9)
    transpose(a, 32, 36, 40, vTW, vTR0, vTR1, 48, CB0)
    a(f"global_store_dwordx4 v{vO0}, {vr(48,4)}, {sr(S_OUT,2)}")
    a(f"global_store_dwordx4 v{vO1}, {vr(52,4)}, {sr(S_OUT,2)}")
    if Ctx.stamps or getattr(Ctx, "dfrom", None) is not None:
        a.wait_vm()
    stamp(a, 10)
    write_stamps(a, 11, 60, extra=(26, 26, sCNT))
    a("s_endpgm")
    flush_stubs(a)
```

```python
from gen_common import *

WKB = 0
MISC = 16384
XR = 32768
KVA, ZA, ZERO, OT = MISC, MISC + 2560, MISC + 2688, MISC + 4096
XF = 128
HI = 32768


def xslot(s):
    return XR + 16384 * s


def wk_base(c):
    return WKB + 4096 * c


def wv_base(c):
    return xslot(2) + 4096 * c if c < 4 else xslot(0) + 4096 * (c - 4)


def wq_base(c):
    return xslot(1) + 4096 * c if c < 4 else WKB + 4096 * (c - 4)


def wo_base(hp):
    return (xslot(2), xslot(0), xslot(1), WKB)[hp >> 2] + 4096 * (hp & 3)


sXC, sJ, sTB, sHP, sW, sT0, sT1, sT2, sTAG, sCNT, sE = 36, 37, 38, 39, 40, 41, 42, 43, 44, 45, 46
sW4K, sL2E, sT64, sCB, sW1K = 47, 48, 49, 50, 51
sMA, sMB = 52, 54
sKV = 56
sOL = 68
sOS, sKS = 76, 4
sOG = 6
sWA, sWB = 10, 12
sXA, sXB = 14, 16
sKA, sKB = 18, 20
sWO = 78
sROT, sR4 = 3, 33


def softmax_stream(P, E1, t):
    mx, mn, s1, s2 = t, t + 1, t + 2, t + 3
    E2 = P
    o = []
    o.append(f"v_max3_f32 v{mx}, v{P}, v{P+1}, v{P+2}")
    o.append(f"v_min3_f32 v{mn}, v{P}, v{P+1}, v{P+2}")
    for k in range(3, 15, 2):
        o.append(f"v_max3_f32 v{mx}, v{mx}, v{P+k}, v{P+k+1}")
        o.append(f"v_min3_f32 v{mn}, v{mn}, v{P+k}, v{P+k+1}")
    o.append(f"v_max_f32 v{mx}, v{mx}, v{P+15}")
    o.append(f"v_min_f32 v{mn}, v{mn}, v{P+15}")
    o.append(f"v_mul_f32 v{mx}, s{sL2E}, v{mx}")
    o.append(f"v_mul_f32 v{mn}, s{sL2E}, v{mn}")
    for k in range(16):
        o.append(f"v_fma_f32 v{E1+k}, v{P+k}, s{sL2E}, -v{mx}")
        o.append(f"v_fma_f32 v{E2+k}, -v{P+k}, s{sL2E}, v{mn}")
        o.append(f"v_exp_f32 v{E1+k}, v{E1+k}")
        o.append(f"v_exp_f32 v{E2+k}, v{E2+k}")
        if k == 2:
            o.append(f"v_add_f32 v{s1}, v{E1}, v{E1+1}")
            o.append(f"v_add_f32 v{s2}, v{E2}, v{E2+1}")
        elif k > 2:
            o.append(f"v_add_f32 v{s1}, v{s1}, v{E1+k-1}")
            o.append(f"v_add_f32 v{s2}, v{s2}, v{E2+k-1}")
    o.append(f"v_add_f32 v{s1}, v{s1}, v{E1+15}")
    o.append(f"v_add_f32 v{s2}, v{s2}, v{E2+15}")
    o.append(f"v_rcp_f32 v{s1}, v{s1}")
    o.append(f"v_rcp_f32 v{s2}, v{s2}")
    for k in range(0, 16, 2):
        for E, s in ((E1, s1), (E2, s2)):
            o.append(f"v_mul_f32 v{E+k}, v{s}, v{E+k}")
            o.append(f"v_mul_f32 v{E+k+1}, v{s}, v{E+k+1}")
        for E, s in ((E1, s1), (E2, s2)):
            o.append(f"v_cvt_pk_bf16_f32 v{E+k//2}, v{E+k}, v{E+k+1}")
    return o


def tr(dst, lo, hi, addr):
    return f"ds_read_b64_tr_b16 {vr(dst,2)}, v{hi if addr >= HI else lo} offset:{addr - HI if addr >= HI else addr}"


def gemm_groups(base, vlo, vhi, acc, WF, swap, blocks, first, nbuf=4, ahead=2):
    steps = [(c, s) for c in blocks for s in range(4)]

    def rd(n):
        c, s = steps[n]
        f = WF + 4 * (n % nbuf)
        return [tr(f, vlo, vhi, base(c) + 1024 * s), tr(f + 2, vlo, vhi, base(c) + 1024 * s + 256)]
    groups = [sum((rd(k) for k in range(ahead)), [])]
    for n, (c, s) in enumerate(steps):
        f, x = vr(WF + 4 * (n % nbuf), 4), vr(XF + 16 * c + 4 * s, 4)
        cin = "0" if (first and n == 0) else vr(acc, 16)
        g = [f"v_mfma_f32_32x32x16_bf16 {vr(acc,16)}, {x if swap else f}, {f if swap else x}, {cin}"]
        g += rd(n + ahead) if n + ahead < len(steps) else []
        groups.append(g)
    return groups


def merge(a, groups, *fills):
    fills = [(list(f), per) for f, per in fills]
    for i, g in enumerate(groups):
        for t in g:
            a(t)
        for f, per in fills:
            n = per(i) if callable(per) else per
            for _ in range(n):
                if f:
                    item = f.pop(0)
                    item() if callable(item) else a(item)
    return [f for f, _ in fills]


def gen_b(a):
    vL, vT, vT2, vT3, vTAG = 1, 2, 3, 4, 5
    vXG = 6
    vWK = 88
    vWXm = (10, 11, 21, 108)
    vWX = vWXm[0]
    vWO = 6
    vXA = 12
    vTK, vTKh, vTVh = 16, 17, 18
    vL16, vT12 = 19, 20
    TS = 22
    vI, vG, vRp, vCp, vCG, vPH = 26, 27, 28, 29, 30, 31
    vRW, vZR, vKW, vZWr, vKR, vZRd, vTO, vOLp, vOW, vOR, vOGp, vWO0, vWO1, vFC, vFV, vRR = range(96, 112)
    SEL, WP = 112, 120
    AK, AV, WF = 32, 48, 64
    M1 = 12
    a("s_setprio 1")
    a(f"s_and_b32 s{sXC}, s2, 7")
    a(f"s_lshr_b32 s{sJ}, s2, 3")
    a(f"v_lshrrev_b32 v{vT}, 6, v0")
    a(f"v_and_b32 v{vL}, 63, v0")
    a(f"v_readfirstlane_b32 s{sW}, v{vT}")
    a(f"s_lshr_b32 s{sT0}, s{sXC}, 1")
    a(f"s_lshl_b32 s{sT0}, s{sT0}, 2")
    a(f"s_lshr_b32 s{sT1}, s{sJ}, 3")
    a(f"s_add_u32 s{sTB}, s{sT0}, s{sT1}")
    a(f"v_lshrrev_b32 v{vT}, 3, v{vL}")
    a(f"v_lshrrev_b32 v{vT2}, 4, v{vL}")
    a(f"v_and_b32 v{vT3}, 7, v{vL}")
    a(f"v_xor_b32 v{vT2}, v{vT2}, v{vT3}")
    a(f"v_lshlrev_b32 v{vT2}, 4, v{vT2}")
    a(f"v_lshl_add_u32 v{vT}, v{vT}, 10, v{vT2}")
    a(f"s_lshl_b32 s{sT0}, s{sTB}, 17")
    a(f"s_lshl_b32 s{sT1}, s{sW}, 15")
    a(f"s_add_u32 s{sT2}, s{sT0}, s{sT1}")
    a(f"s_lshl_b32 s{sW4K}, s{sW}, 12")
    a(f"v_add_u32 v{vXG}, s{sT2}, v{vT}")
    a(f"v_xor_b32 v{vXG+1}, 64, v{vXG}")
    a(f"v_add_u32 v{vXG+1}, 0x2000, v{vXG+1}")
    a(f"v_add_u32 v{vXG+2}, 0x4000, v{vXG}")
    a(f"v_add_u32 v{vXG+3}, 0x4000, v{vXG+1}")
    a.wait_lg()

    def dma(m0, vaddr, sb, imm=0, slot=None):
        a(f"s_add_u32 m0, s{m0[0]}, {m0[1] - imm}")
        if slot:
            a(slot)
        return a(f"global_load_lds_dwordx4 v{vaddr}, {sr(sb,2)}" + (f" offset:{imm}" if imm else ""))

    def dma_x1(c, q, slot=None):
        return dma((sW4K, xslot(c % 3) + 1024 * q), vXG + q, sXB if c >= 4 else sXA, 128 * (c & 3), slot)

    def dma_wk(c, slot=None):
        return dma((sW1K, wk_base(c)), vWK + (c & 3), sKB if c >= 4 else sKA, 0, slot)
    tok = {}

    def wpiece(key, col, sb, ldsbase, m):
        def f(slot=None):
            tok[key] = dma((sW4K, ldsbase + 1024 * m), vWXm[m], sb, col, slot)
        return f

    def wopiece(key, grp, m):
        def f(slot=None):
            tok[key] = dma((sW4K, wo_base(4 * grp) + 1024 * m), vWO + m, (sXA, sXB, sKA, sKB)[grp], 0, slot)
        return f
    a(f"s_lshr_b32 s{sT1}, s{sJ}, 3")
    a(f"s_add_u32 s{sR4}, s{sT1}, s{sJ}")
    a(f"s_and_b32 s{sROT}, s{sR4}, {1 if getattr(Ctx, 'rot', True) else 0}")
    a(f"s_lshl_b32 s{sT0}, s{sROT}, 9")
    a.wait_lg()
    fine(a, 2, 1)
    a(f"s_add_u32 s{sXA}, s{S_X}, s{sT0}")
    a(f"s_addc_u32 s{sXA+1}, s{S_X+1}, 0")
    pre = [f"s_and_b32 s{sT1}, s{sXC}, 1", f"s_lshl_b32 s{sT1}, s{sT1}, 3", f"s_and_b32 s{sCB}, s{sJ}, 7",
           f"s_add_u32 s{sHP}, s{sT1}, s{sCB}"]
    for q in range(4):
        dma_x1(0, q, pre[q])
    a(f"s_lshl_b32 s{sW1K}, s{sW}, 10")
    a(f"v_lshlrev_b32 v{vL16}, 4, v{vL}")
    a(f"s_lshl_b32 s{sT1}, s{sHP}, 10")
    a(f"v_add_u32 v{vT}, s{sT1}, v{vL16}")
    tok[0] = dma((sW1K, wk_base(7)), vT, S_WPHI, 0, f"s_mov_b32 s{sT1}, {FL_EB}")
    a(f"s_load_dword s{sE}, {sr(S_WS,2)}, s{sT1}")
    pre = [f"v_lshrrev_b32 v{vT}, 2, v{vL}", f"v_mul_u32_u24 v{vT}, 3072, v{vT}", f"v_and_b32 v{vCp}, 3, v{vL}",
           f"v_lshl_add_u32 v{vWX}, v{vCp}, 4, v{vT}", f"s_lshl_b32 s{sT1}, s{sHP}, 6", f"v_add_u32 v{vWX}, s{sT1}, v{vWX}",
           f"s_mul_i32 s{sT1}, s{sW}, {16*3072}", f"v_add_u32 v{vWK}, s{sT1}, v{vWX}"]
    for q in range(4):
        tok[1] = dma_x1(1, q, pre[q])
    for q in range(4):
        tok[2] = dma_x1(2, q, pre[4 + q])
    fine(a, 2, 2)
    a(f"s_xor_b32 s{sT0}, s{sT0}, 512")
    a(f"s_add_u32 s{sXB}, s{S_X}, s{sT0}")
    a(f"s_addc_u32 s{sXB+1}, s{S_X+1}, 0")
    a(f"s_mul_i32 s{sT0}, s{sROT}, {256*3072}")
    a(f"s_add_u32 s{sKA}, s{S_W}, s{sT0}")
    a(f"s_addc_u32 s{sKA+1}, s{S_W+1}, 0")
    a(f"s_sub_u32 s{sT0}, {256*3072}, s{sT0}")
    a(f"s_add_u32 s{sKB}, s{S_W}, s{sT0}")
    a(f"s_addc_u32 s{sKB+1}, s{S_W+1}, 0")
    for k in (3, 2, 1, 0):
        a(f"v_add_u32 v{vWK+k}, {64*3072*k + 1024}, v{vWK}")
    U = 48
    aw = []
    aw += [f"s_lshl_b32 s{sT1}, s{sHP}, 11", f"s_add_u32 s{sT0}, s{sT2}, s{sT1}", f"s_add_u32 s{sT0}, s{sT0}, {WS_O}",
           f"s_add_u32 s{sOS}, s{S_WS}, s{sT0}", f"s_addc_u32 s{sOS+1}, s{S_WS+1}, 0",
           f"s_lshl_b32 s{sT0}, s{sHP}, 4", f"s_add_u32 s{sT0}, s{sT0}, s{sTB}", f"s_mul_i32 s{sT0}, s{sT0}, {KVP_STRIDE}",
           f"s_add_u32 s{sT0}, s{sT0}, {WS_KVP}", f"s_add_u32 s{sKS}, s{S_WS}, s{sT0}", f"s_addc_u32 s{sKS+1}, s{S_WS+1}, 0",
           f"v_lshlrev_b32 v{vT12}, 4, v0"]
    aw += [f"v_and_b32 v{vI}, 31, v{vL}", f"v_lshrrev_b32 v{vG}, 5, v{vL}", f"v_bfe_u32 v{vRp}, v{vL}, 2, 2",
           f"v_bfe_u32 v{vCG}, v{vL}, 4, 1", f"v_lshrrev_b32 v{U}, 1, v{vCp}",
           f"v_lshlrev_b32 v{vPH}, 9, v{vG}", f"v_lshl_add_u32 v{vPH}, v{vRp}, 5, v{vPH}",
           f"v_lshl_add_u32 v{vPH}, v{vCG}, 4, v{vPH}", f"v_lshl_add_u32 v{vPH}, v{U}, 3, v{vPH}",
           f"v_add_u32 v{vPH}, s{sW1K}, v{vPH}",
           f"v_bfe_u32 v{U}, v{vL}, 1, 3", f"v_xor_b32 v{U}, v{U}, v{vG}", f"v_lshlrev_b32 v{U}, 4, v{U}",
           f"v_lshl_add_u32 v{U}, v{vI}, 7, v{U}", f"s_add_u32 s{sT0}, s{sW4K}, {XR}", f"v_add_u32 v{vXA}, s{sT0}, v{U}"]
    aw += [f"v_xor_b32 v{vXA+s}, {32*s}, v{vXA}" for s in range(1, 4)]
    aw += [f"v_bfe_u32 v{U}, v{vL}, 2, 1", f"v_cmp_eq_u32 {sr(sMA,2)}, v{U}, v{vG}", f"v_cmp_eq_u32 {sr(sMB,2)}, 1, v{vCG}",
           f"s_mov_b32 s{sCNT}, 0", f"s_mov_b32 s{sL2E}, 0x3fb8aa3b"]
    aw += [f"v_add_u32 v{vWXm[m]}, {16*3072*m}, v{vWX}" for m in range(1, 4)]
    aw += [f"s_mul_i32 s{sT0}, s{sW}, {64*3072}", f"s_add_u32 s{sWA}, s{sKA}, s{sT0}", f"s_addc_u32 s{sWA+1}, s{sKA+1}, 0",
           f"s_add_u32 s{sWB}, s{sKB}, s{sT0}", f"s_addc_u32 s{sWB+1}, s{sKB+1}, 0"]
    aw += [f"v_lshl_add_u32 v{U}, v{vG}, 3, v{vRp}", f"v_lshlrev_b32 v{U}, 6, v{U}",
           f"v_lshlrev_b32 v{U+1}, 3, v{vCp}", f"v_lshl_add_u32 v{U+1}, v{vCG}, 5, v{U+1}",
           f"v_add_u32 v{U+1}, v{U}, v{U+1}", f"v_add_u32 v{vTVh}, {HI}, v{U+1}",
           f"v_and_b32 v{U+1}, 1, v{vCp}", f"v_lshl_add_u32 v{U}, v{U+1}, 5, v{U}",
           f"v_lshl_add_u32 v{U}, v{vCG}, 4, v{U}", f"v_lshrrev_b32 v{U+1}, 1, v{vCp}",
           f"v_lshl_add_u32 v{vTK}, v{U+1}, 3, v{U}", f"v_add_u32 v{vTKh}, {HI}, v{vTK}"]
    aw += [f"v_bfe_u32 v{U}, v{vL}, 2, 1", f"v_bfe_u32 v{U+1}, v{vL}, 3, 1",
           f"v_lshl_add_u32 v{U+2}, v{U+1}, 2, v{vCp}", f"v_and_b32 v{U+3}, 1, v{U+2}",
           f"v_lshlrev_b32 v{U+3}, 4, v{U+3}", f"v_mov_b32 v{U+4}, 0x3f80", f"v_lshlrev_b32 v{U+3}, v{U+3}, v{U+4}",
           f"v_cmp_eq_u32 vcc, v{vCG}, v{vG}", f"v_cndmask_b32 v{U+3}, 0, v{U+3}, vcc",
           f"v_lshrrev_b32 v{U+4}, 1, v{U+2}", f"v_lshl_add_u32 v{U+4}, v{U}, 2, v{U+4}"]
    for k in range(8):
        aw += [f"v_cmp_eq_u32 vcc, {k}, v{U+4}", f"v_cndmask_b32 v{SEL+k}, 0, v{U+3}, vcc"]
    aw += [f"v_lshl_add_u32 v{U+2}, v{U}, 3, v{U+2}", f"v_lshl_add_u32 v{U+2}, v{vG}, 4, v{U+2}",
           f"v_lshl_add_u32 v{U+2}, v{vCG}, 5, v{U+2}", f"v_lshlrev_b32 v{U+2}, 1, v{U+2}",
           f"v_add_u32 v{vZWr}, {ZA}, v{U+2}"]
    aw += [f"s_add_u32 s{sT0}, s{sW4K}, {MISC}", f"v_add_u32 v{vRW}, s{sT0}, v{vL16}",
           f"s_add_u32 s{sT0}, s{sW1K}, {MISC}", f"v_add_u32 v{vRR}, s{sT0}, v{vL16}",
           f"v_lshlrev_b32 v{U}, 2, v{vG}", f"v_lshl_add_u32 v{U}, v{vI}, 3, v{U}", f"v_add_u32 v{vZR}, {MISC}, v{U}"]
    aw += [f"v_mul_u32_u24 v{U}, 80, v{vI}", f"v_lshl_add_u32 v{U}, v{vG}, 4, v{U}",
           f"s_lshr_b32 s{sT0}, s{sW}, 1", f"s_lshl_b32 s{sT0}, s{sT0}, 5", f"s_and_b32 s{sT1}, s{sW}, 1",
           f"s_lshl_b32 s{sT1}, s{sT1}, 3", f"s_add_u32 s{sT0}, s{sT0}, s{sT1}", f"s_add_u32 s{sT0}, s{sT0}, {KVA}",
           f"v_add_u32 v{vKW}, s{sT0}, v{U}",
           f"v_bfe_u32 v{U}, v{vL}, 3, 2", f"v_lshl_add_u32 v{U}, v{U}, 2, v{vCp}", f"v_lshl_add_u32 v{U}, v{vG}, 4, v{U}",
           f"v_mul_u32_u24 v{U}, 80, v{U}", f"v_add_u32 v{U}, {KVA}, v{U}", f"v_mov_b32 v{U+1}, {ZERO}",
           f"v_cndmask_b32 v{vKR}, v{U+1}, v{U}, {sr(sMA,2)}",
           f"v_lshlrev_b32 v{U}, 6, v{vG}", f"v_add_u32 v{U}, {ZA}, v{U}",
           f"v_cndmask_b32 v{vZRd}, v{U+1}, v{U}, {sr(sMA,2)}"]
    aw += [f"s_mul_i32 s{sT0}, s{sHP}, {16*KVP_STRIDE}", f"s_add_u32 s{sT0}, s{sT0}, {WS_KVP + KVP_STRIDE}"]
    for k in range(4):
        aw += [f"s_add_u32 s{sT1}, s{sTB}, {k}", f"s_and_b32 s{sT1}, s{sT1}, 3", f"s_lshl_b32 s{sT1}, s{sT1}, 14",
               f"s_add_u32 s{sT1}, s{sT1}, s{sT0}",
               f"s_add_u32 s{sKV+2*k}, s{S_WS}, s{sT1}", f"s_addc_u32 s{sKV+2*k+1}, s{S_WS+1}, 0"]
    aw += [f"s_lshl_b32 s{sT64}, s{sXC}, 2", f"s_lshr_b32 s{sT0}, s{sJ}, 3", f"s_add_u32 s{sT64}, s{sT64}, s{sT0}"]
    aw += [f"v_lshrrev_b32 v{U}, 3, v{vL}", f"v_and_b32 v{U+1}, 7, v{vL}",
           f"v_lshlrev_b32 v{U+2}, 1, v{vCG}", f"v_xor_b32 v{U+2}, v{U+2}, v{U+1}", f"v_lshlrev_b32 v{U+2}, 4, v{U+2}",
           f"v_lshl_add_u32 v{vWO0}, v{U}, 10, v{U+2}",
           f"s_lshl_b32 s{sT0}, s{sCB}, 7", f"s_lshl_b32 s{sT1}, s{sW}, 15", f"s_add_u32 s{sT2}, s{sT0}, s{sT1}",
           f"s_add_u32 s{sWO}, s{S_WO}, s{sT2}", f"s_addc_u32 s{sWO+1}, s{S_WO+1}, 0",
           f"v_lshlrev_b32 v{U+2}, 4, v{U+1}", f"v_lshl_add_u32 v{vOGp}, v{U}, 11, v{U+2}",
           f"s_lshl_b32 s{sT0}, s{sT64}, 17", f"s_add_u32 s{sT0}, s{sT0}, s{sT2}", f"s_add_u32 s{sT0}, s{sT0}, 1024",
           f"s_add_u32 s{sOG}, s{S_OUT}, s{sT0}", f"s_addc_u32 s{sOG+1}, s{S_OUT+1}, 0",
           f"s_add_u32 s{sOG+2}, s{sOG}, 0x4000", f"s_addc_u32 s{sOG+3}, s{sOG+1}, 0",
           f"s_mul_i32 s{sT0}, s{sW}, 2304", f"s_add_u32 s{sT0}, s{sT0}, {OT}",
           f"v_mul_u32_u24 v{U}, 144, v{U}", f"v_add3_u32 v{vOR}, v{U}, v{U+2}, s{sT0}",
           f"v_and_b32 v{U+1}, 15, v{vL}", f"v_lshrrev_b32 v{U+2}, 4, v{vL}",
           f"v_mul_u32_u24 v{U}, 144, v{U+1}", f"v_lshl_add_u32 v{U}, v{U+2}, 3, v{U}", f"v_add_u32 v{vOW}, s{sT0}, v{U}",
           f"v_lshl_add_u32 v{U}, v{U+2}, 3, v{vRp}", f"v_lshlrev_b32 v{U}, 7, v{U}", f"v_lshl_add_u32 v{U}, v{vCp}, 3, v{U}",
           f"v_lshrrev_b32 v{U+2}, 1, v{vRp}", f"v_lshl_add_u32 v{U+2}, v{vCG}, 1, v{U+2}",
           f"v_lshl_add_u32 v{vTO}, v{U+2}, 5, v{U}",
           f"v_lshlrev_b32 v{U}, 4, v{U+1}", f"v_lshl_add_u32 v{U}, v{vCG}, 10, v{U}", f"v_lshl_add_u32 v{vOLp}, v{vG}, 9, v{U}",
           f"s_lshl_b32 s{sT0}, s{sT64}, 16", f"s_lshr_b32 s{sT1}, s{sW}, 1", f"s_lshl_b32 s{sT1}, s{sT1}, 15",
           f"s_add_u32 s{sT0}, s{sT0}, s{sT1}", f"s_and_b32 s{sT1}, s{sW}, 1", f"s_lshl_b32 s{sT1}, s{sT1}, 8",
           f"s_add_u32 s{sT0}, s{sT0}, s{sT1}", f"s_add_u32 s{sT0}, s{sT0}, {WS_O + 4096}",
           ]
    for k in range(4):
        aw += [f"s_add_u32 s{sT1}, s{sR4}, {k}", f"s_and_b32 s{sT1}, s{sT1}, 3", f"s_lshl_b32 s{sT1}, s{sT1}, 13",
               f"s_add_u32 s{sT1}, s{sT1}, s{sT0}",
               f"s_add_u32 s{sOL+2*k}, s{S_WS}, s{sT1}", f"s_addc_u32 s{sOL+2*k+1}, s{S_WS+1}, 0"]
    aw += [f"s_lshr_b32 s{sT0}, s{sT64}, 1", f"s_lshl_b32 s{sT0}, s{sT0}, 11", f"s_lshl_b32 s{sT1}, s{sW}, 9",
           f"s_add_u32 s{sT0}, s{sT0}, s{sT1}", f"s_add_u32 s{sT0}, s{sT0}, {FL_FC}",
           f"v_lshl_add_u32 v{vFC}, v{vCp}, 7, s{sT0}",
           f"s_lshl_b32 s{sT0}, s{sTB}, 4", f"s_add_u32 s{sT0}, s{sT0}, s{sHP}", f"s_lshl_b32 s{sT0}, s{sT0}, 7",
           f"s_add_u32 s{sT0}, s{sT0}, {FL_FC}", f"v_mov_b32 v{vFV}, s{sT0}"]

    def take(n):
        k = 0
        while aw and (k < n or aw[0].startswith("s_addc") or aw[0].endswith("vcc")):
            a(aw.pop(0))
            k += 1
    per = (len(aw) + 6) // 7
    for c in range(7):
        dma_wk(c, "s_nop 0")
        fine(a, 2, 3 + c)
        take(per)
    assert not aw
    fine(a, 2, 10)
    stamp(a, 1)

    WFK = 48
    kq = [(c, s) for c in range(8) for s in range(4)]
    nrd = [0]

    def krd():
        c, s = kq[nrd[0]]
        f = WFK + 4 * (nrd[0] % 8)
        nrd[0] += 1
        a(tr(f, vTK, vTKh, wk_base(c) + 1024 * s))
        a(tr(f + 2, vTK, vTKh, wk_base(c) + 1024 * s + 256))
    nmf = [0]

    def kmf():
        n = nmf[0]
        c, s = kq[n]
        nmf[0] += 1
        return f"v_mfma_f32_32x32x16_bf16 {vr(AK,16)}, {vr(WFK+4*(n%8),4)}, {vr(XF+16*c+4*s,4)}, {vr(AK,16) if n else 0}"
    wv = [wpiece("v0", 2048, sWA, xslot(2), m) for m in range(4)] + [wpiece("v1", 2048, sWB, xslot(0), m) for m in range(4)]
    for c in range(8):
        if c == 0:
            fine(a, 1, 1)
        a.wait_vm(tok[c])
        fine(a, 1, 2 + c)
        t = None
        for s in range(4):
            t = a(f"ds_read_b128 {vr(XF+16*c+4*s,4)}, v{vXA+s} offset:{16384*(c%3)}")
        if c == 0:
            for s in range(2):
                a(f"ds_read_b64_tr_b16 {vr(WP+4*s,2)}, v{vPH} offset:{wk_base(7)+256*s}")
                a(f"ds_read_b64_tr_b16 {vr(WP+4*s+2,2)}, v{vPH} offset:{wk_base(7)+256*s+128}")
            a.wait_lg()
            dma_wk(7, f"s_mul_i32 s{sTAG}, s{sE}, {TAG_MUL}")
            a(f"s_add_u32 s{sTAG}, s{sTAG}, {TAG_ADD}")
            a(f"v_mov_b32 v{vTAG}, s{sTAG}")
        if c == 3:
            a("s_barrier")
            for _ in range(7):
                krd()
        a.wait_lg(t)
        if c < 5:
            iss = [(lambda slot, q=q: tok.__setitem__(c + 3, dma_x1(c + 3, q, slot))) for q in range(4)]
        elif c == 5:
            iss = [wv.pop(0), None, wv.pop(0), None]
        else:
            iss = [wv.pop(0), None, None, None]
        nm = {3: 2, 4: 2, 5: 2, 6: 1, 7: 1}.get(c, 0)
        for q in range(4):
            if nm == 0:
                if c == 0:
                    iss[q](f"v_cndmask_b32 v{WP+2*q}, 0, v{WP+2*q}, {sr(sMA,2)}")
                    a(f"v_cndmask_b32 v{WP+2*q+1}, 0, v{WP+2*q+1}, {sr(sMA,2)}")
                else:
                    iss[q]("s_nop 0")
                continue
            if iss[q]:
                iss[q](kmf())
            else:
                a(kmf())
            if nrd[0] < 32:
                krd()
            if nm == 2:
                a(kmf())
                if nrd[0] < 32:
                    krd()
    stamp(a, 2)
    fine(a, 1, 10)
    KB, P, E1 = 80, 32, 80
    wv.pop(0)()
    for k in range(8):
        a(f"v_cvt_pk_bf16_f32 v{KB+k}, v{AK+2*k}, v{AK+2*k+1}")
    a(f"v_mfma_f32_32x32x16_bf16 {vr(P,16)}, {vr(WP,4)}, {vr(KB,4)}, 0")
    a(f"v_mfma_f32_32x32x16_bf16 {vr(P,16)}, {vr(WP+4,4)}, {vr(KB+4,4)}, {vr(P,16)}")
    wv.pop(0)()
    a.wait_vm(tok["v0"])
    a("s_barrier")
    g1 = gemm_groups(wv_base, None, vTVh, AV, WF, True, range(4), True, ahead=3)
    sm = softmax_stream(P, E1, TS)
    wq = [wpiece("q0", 0, sWA, xslot(1), m) for m in range(4)] + [wpiece("q1", 0, sWB, WKB, m) for m in range(4)]
    def clear(off):
        def f():
            a(f"global_store_dwordx4 v{vL16}, {vr(M1,4)}, {sr(sOS,2)} offset:{off} sc1")
        return f
    for k in range(4):
        a(f"v_mov_b32 v{M1+k}, -1")
    sm, wq = merge(a, g1, (sm, 5), (wv + [clear(0), clear(1024)] + wq, lambda i: 1 if i % 4 == 1 else 0))
    a.wait_vm(tok["v1"])
    a("s_barrier")
    g2 = gemm_groups(wv_base, None, vTVh, AV, WF, True, range(4, 8), False, ahead=3)
    sm, wq = merge(a, g2, (sm, 5), (wq, lambda i: 1 if i % 3 == 1 else 0))
    for t in sm:
        a(t)
    stamp(a, 3)
    PP, PN = E1, P
    DP, DN, VB, APK, ANK = 64, 32, 88, 48, 56
    PN2 = 88
    for k in range(0, 8, 2):
        a(f"v_mov_b64 {vr(PN2+k,2)}, {vr(PN+k,2)}")
    a(f"v_mfma_f32_32x32x16_bf16 {vr(DP,16)}, {vr(PP,4)}, {vr(SEL,4)}, 0")
    a(f"v_mfma_f32_32x32x16_bf16 {vr(DP,16)}, {vr(PP+4,4)}, {vr(SEL+4,4)}, {vr(DP,16)}")
    a(f"v_mfma_f32_32x32x16_bf16 {vr(DN,16)}, {vr(PN2,4)}, {vr(SEL,4)}, 0")
    a(f"v_mfma_f32_32x32x16_bf16 {vr(DN,16)}, {vr(PN2+4,4)}, {vr(SEL+4,4)}, {vr(DN,16)}")
    VB = 80
    wq.pop(0)()
    for k in range(8):
        a(f"v_cvt_pk_bf16_f32 v{VB+k}, v{AV+2*k}, v{AV+2*k+1}")
    for k in range(8):
        a(f"v_cvt_pk_bf16_f32 v{APK+k}, v{DP+2*k}, v{DP+2*k+1}")
    ZS = 22
    for k in range(0, 8, 2):
        a(f"v_pk_add_f32 {vr(DP+k,2)}, {vr(DP+k,2)}, {vr(DP+8+k,2)}")
    for k in range(8):
        a(f"v_cvt_pk_bf16_f32 v{ANK+k}, v{DN+2*k}, v{DN+2*k+1}")
    a(f"v_pk_add_f32 {vr(88,2)}, {vr(DP,2)}, {vr(DP+2,2)}")
    a(f"v_pk_add_f32 {vr(90,2)}, {vr(DP+4,2)}, {vr(DP+6,2)}")
    KP, KN = DP, DN
    a(f"v_mfma_f32_32x32x16_bf16 {vr(KP,16)}, {vr(APK,4)}, {vr(VB,4)}, 0")
    a(f"v_mfma_f32_32x32x16_bf16 {vr(KP,16)}, {vr(APK+4,4)}, {vr(VB+4,4)}, {vr(KP,16)}")
    for k in range(0, 8, 2):
        a(f"v_pk_add_f32 {vr(DN+k,2)}, {vr(DN+k,2)}, {vr(DN+8+k,2)}")
    a(f"v_pk_add_f32 {vr(92,2)}, {vr(DN,2)}, {vr(DN+2,2)}")
    a(f"v_pk_add_f32 {vr(94,2)}, {vr(DN+4,2)}, {vr(DN+6,2)}")
    a(f"v_mfma_f32_32x32x16_bf16 {vr(KN,16)}, {vr(ANK,4)}, {vr(VB,4)}, 0")
    a(f"v_mfma_f32_32x32x16_bf16 {vr(KN,16)}, {vr(ANK+4,4)}, {vr(VB+4,4)}, {vr(KN,16)}")
    wq.pop(0)()
    assert not wq
    a(f"v_pk_add_f32 {vr(88,2)}, {vr(88,2)}, {vr(90,2)}")
    a(f"v_pk_add_f32 {vr(92,2)}, {vr(92,2)}, {vr(94,2)}")
    a(f"v_add_f32 v{ZS}, v88, v89")
    a(f"v_add_f32 v{ZS+1}, v92, v93")
    a(f"v_lshrrev_b32 v{vT}, 1, v{vL16}")
    a(f"s_add_u32 s{sT0}, s{sW4K}, s{sW1K}")
    a(f"s_add_u32 s{sT0}, s{sT0}, {MISC}")
    a(f"v_add_u32 v{vT}, s{sT0}, v{vT}")
    a(f"ds_write_b64 v{vT}, {vr(ZS,2)}")
    SV = 48
    for k in range(8):
        a(f"v_cndmask_b32 v{SV+k}, v{KP+k}, v{KP+8+k}, {sr(sMB,2)}")
    RQ, RZ, PB = 64, 80, 88
    a(f"s_cmp_lt_u32 s{sW}, 2")
    a("s_cbranch_scc1 B_red_lo")
    a(f"s_cmp_eq_u32 s{sW}, 2")
    a("s_cbranch_scc1 B_red_2")
    a("s_branch B_red_3")
    a.raw("B_red_lo:")
    a(f"s_cmp_eq_u32 s{sW}, 1")
    a("s_cbranch_scc1 B_red_1")
    state = (list(a.vm), list(a.lg), list(a.hist), a.pos)
    for w in range(4):
        a.vm, a.lg, a.hist, a.pos = list(state[0]), list(state[1]), list(state[2]), state[3]
        a.raw(f"B_red_{w}:")
        for q in range(2):
            if q != w:
                a(f"ds_write_b128 v{vRW}, {vr(SV+4*q,4)} offset:{1024*q}")
        for k in range(8):
            a(f"v_cndmask_b32 v{SV+8+k}, v{KN+k}, v{KN+8+k}, {sr(sMB,2)}")
        for q in range(2, 4):
            if q != w:
                a(f"ds_write_b128 v{vRW}, {vr(SV+4*q,4)} offset:{1024*q}")
        a.wait_vm(tok["q0"])
        a.wait_lg()
        a("s_barrier")
        n = 0
        for w2 in range(4):
            if w2 != w:
                a(f"ds_read_b128 {vr(RQ+4*n,4)}, v{vRR} offset:{4096*w2}")
                n += 1
        for w2 in range(4):
            for h in range(2):
                a(f"ds_read_b32 v{RZ+2*w2+h}, v{vZR} offset:{5120*w2+256*h}")
        OQ = SV + 4 * w
        for n in range(3):
            a(f"v_pk_add_f32 {vr(OQ,2)}, {vr(OQ,2)}, {vr(RQ+4*n,2)}")
            a(f"v_pk_add_f32 {vr(OQ+2,2)}, {vr(OQ+2,2)}, {vr(RQ+4*n+2,2)}")
        a(f"v_cvt_pk_bf16_f32 v{PB}, v{OQ}, v{OQ+1}")
        a(f"v_cvt_pk_bf16_f32 v{PB+1}, v{OQ+2}, v{OQ+3}")
        if w < 3:
            a("s_branch B_red_done")
    a.raw("B_red_done:")
    for k in (0, 2):
        a(f"v_pk_add_f32 {vr(RZ+2*k,2)}, {vr(RZ+2*k,2)}, {vr(RZ+2*k+2,2)}")
    a(f"v_pk_add_f32 {vr(RZ,2)}, {vr(RZ,2)}, {vr(RZ+4,2)}")
    a(f"v_add_f32 v{PB+2}, v{RZ}, v{RZ+1}")
    a(f"v_mov_b32 v{PB+3}, v{vTAG}")
    a(f"global_store_dwordx4 v{vT12}, {vr(PB,4)}, {sr(sKS,2)} sc1")
    store_flag(a, vFV, vTAG, S_WS)
    stamp(a, 4)

    wa = [f"v_mov_b32 v{vWO}, v{vWO0}", f"v_xor_b32 v{vWO+1}, 64, v{vWO0}", f"v_add_u32 v{vWO+1}, 0x2000, v{vWO+1}",
          f"v_add_u32 v{vWO+2}, 0x4000, v{vWO}", f"v_add_u32 v{vWO+3}, 0x4000, v{vWO+1}"]
    for k, sb in enumerate((sXA, sXB, sKA, sKB)):
        wa += [f"s_add_u32 s{sT0}, s{sR4}, {k}", f"s_and_b32 s{sT0}, s{sT0}, 3", f"s_lshl_b32 s{sT0}, s{sT0}, 17",
               f"s_add_u32 s{sb}, s{sWO}, s{sT0}", f"s_addc_u32 s{sb+1}, s{sWO+1}, 0"]
    AQ = 32
    wo0 = [wopiece("o0", grp, m) for grp in (0, 1) for m in range(4)]
    g = gemm_groups(wq_base, vTK, vTKh, AQ, 48, False, range(4), True, nbuf=8, ahead=6)
    _, wo0 = merge(a, g, (wa, 5), (wo0, lambda i: 1 if i >= 5 and i % 3 == 2 else 0))
    a.wait_vm(tok["q1"])
    a("s_barrier")
    g = gemm_groups(wq_base, vTK, vTKh, AQ, 48, False, range(4, 8), False, nbuf=8, ahead=6)
    merge(a, g, (wo0, lambda i: 1 if i % 3 == 2 else 0))
    KL = 128
    vT16b = 12
    a(f"v_add_u32 v{vT16b}, {2*KVP_STRIDE}, v{vT12}")
    kloads = [f"global_load_dwordx4 {vr(KL+4*p,4)}, v{vT16b if p & 2 else vT12}, {sr(sKV+2*(p//4),2)} offset:{((p&1)-1)*KVP_STRIDE} sc1" for p in range(16)]
    kl = list(kloads)
    a("s_barrier")
    a(kl.pop(0))
    for k in range(8):
        a(f"v_cvt_pk_bf16_f32 v{64+k}, v{AQ+2*k}, v{AQ+2*k+1}")
    a(f"v_mfma_f32_32x32x16_bf16 {vr(P,16)}, {vr(WP,4)}, {vr(64,4)}, 0")
    a(f"v_mfma_f32_32x32x16_bf16 {vr(P,16)}, {vr(WP+4,4)}, {vr(68,4)}, {vr(P,16)}")
    a(kl.pop(0))
    a(kl.pop(0))
    stamp(a, 5)
    a(f"v_and_b32 v{vT}, 15, v{vL}")
    a(f"v_lshlrev_b32 v{vT}, 2, v{vT}")
    a(f"v_mov_b32 v{vT3}, 0")
    a(f"ds_write_b32 v{vT}, v{vT3} offset:{ZERO}")
    sm = softmax_stream(P, E1, TS)
    chunks = [sm[i:i + 9] for i in range(0, len(sm), 9)]
    merge(a, chunks, (kl, 1))
    PQ = (E1, E1 + 4, P, P + 4)
    stamp(a, 6)
    S4, UT = 48, 56

    wo1 = [wopiece("o1", grp, m) for grp in (2, 3) for m in range(4)]

    def ksum(emit):
        for p in range(16):
            r = KL + 4 * p
            if emit is a and p >= 8:
                wo1.pop(0)()
            d = S4 if p == 0 else UT + 4 * (p & 1)
            emit(f"v_lshlrev_b32 v{d}, 16, v{r}")
            emit(f"v_and_b32 v{d+1}, 0xffff0000, v{r}")
            emit(f"v_lshlrev_b32 v{d+2}, 16, v{r+1}")
            emit(f"v_and_b32 v{d+3}, 0xffff0000, v{r+1}")
            if p == 0:
                emit(f"v_mov_b32 v{S4+4}, v{r+2}")
                emit(f"v_xor_b32 v{S4+5}, v{vTAG}, v{r+3}")
            else:
                emit(f"v_bitop3_b32 v{S4+5}, v{vTAG}, v{r+3}, v{S4+5} bitop3:0xbe")
                emit(f"v_pk_add_f32 {vr(S4,2)}, {vr(S4,2)}, {vr(d,2)}")
                emit(f"v_pk_add_f32 {vr(S4+2,2)}, {vr(S4+2,2)}, {vr(d+2,2)}")
                emit(f"v_add_f32 v{S4+4}, v{S4+4}, v{r+2}")
        emit(f"v_cmp_ne_u32 vcc, 0, v{S4+5}")
    ksum(a)
    a("s_cbranch_vccnz B_kv_r")
    a.raw("B_kv_k:")
    st = ["B_kv_r:"] + ["    " + t for t in kloads]
    st += [f"    s_add_u32 s{sCNT}, s{sCNT}, 1", f"    s_cmp_gt_u32 s{sCNT}, {SPIN_MAX}", "    s_waitcnt vmcnt(0)",
           "    s_cbranch_scc1 B_kv_k"]
    ksum(lambda t: st.append("    " + t))
    st += ["    s_nop 1", "    s_cbranch_vccnz B_kv_r", "    s_branch B_kv_k"]
    Retry.stubs.append("\n".join(st))
    if Ctx.stamps:
        a(f"s_mov_b32 s27, s{sCNT}")
    a(f"v_cvt_pk_bf16_f32 v{UT}, v{S4}, v{S4+1}")
    a(f"v_cvt_pk_bf16_f32 v{UT+1}, v{S4+2}, v{S4+3}")
    a(f"v_cvt_pk_bf16_f32 v{UT+2}, v{S4+4}, v{S4+4}")
    a(f"ds_write_b64 v{vKW}, {vr(UT,2)}")
    a(f"ds_write_b16 v{vZWr}, v{UT+2}")
    a(f"global_load_dword v{vFV}, v{vFC}, {sr(S_WS,2)} sc1")
    a.wait_vm(tok["o0"])
    a.wait_lg()
    a("s_barrier")
    stamp(a, 7)
    FK, FZ, NUM, DEN = 128, 144, 64, 48
    for s in range(4):
        a(f"ds_read_b128 {vr(FZ+4*s,4)}, v{vZRd} offset:{16*s}")
        a(f"ds_read_b128 {vr(FK+4*s,4)}, v{vKR} offset:{16*s}")
    for s in range(4):
        a(f"v_mfma_f32_32x32x16_bf16 {vr(DEN,16)}, {vr(FZ+4*s,4)}, {vr(PQ[s],4)}, {vr(DEN,16) if s else 0}")
    for s in range(4):
        a(f"v_mfma_f32_32x32x16_bf16 {vr(NUM,16)}, {vr(FK+4*s,4)}, {vr(PQ[s],4)}, {vr(NUM,16) if s else 0}")
    vTOl, vTOh = 6, 10
    for ct in range(4):
        a(f"v_xor_b32 v{vTOl+ct}, {32*ct}, v{vTO}")
        a(f"v_add_u32 v{vTOh+ct}, {HI}, v{vTOl+ct}")
    a(f"v_add_f32 v{DEN}, 0x358637bd, v{DEN}")
    a(f"v_rcp_f32 v{DEN}, v{DEN}")
    OB = 88
    for k in range(8):
        a(f"v_pk_mul_f32 {vr(NUM+2*k,2)}, {vr(NUM+2*k,2)}, {vr(DEN,2)} op_sel_hi:[1,0]")
        a(f"v_cvt_pk_bf16_f32 v{OB+k}, v{NUM+2*k}, v{NUM+2*k+1}")
        if k == 3:
            a(f"global_store_dwordx4 v{vL16}, {vr(OB,4)}, {sr(sOS,2)} sc1")
    a(f"global_store_dwordx4 v{vL16}, {vr(OB+4,4)}, {sr(sOS,2)} offset:1024 sc1")
    stamp(a, 8)
    AO = 32
    WB = [48, 64, 128, 144, 160, 176]

    def wrd(h):
        o = []
        for ct in range(4):
            f = WB[h % len(WB)] + 4 * ct
            o.append(tr(f, vTOl + ct, vTOh + ct, wo_base(h)))
            o.append(tr(f + 2, vTOl + ct, vTOh + ct, wo_base(h) + 512))
        return o
    NPRE = len(WB) - 1
    for h in range(NPRE):
        for t in wrd(h):
            a(t)
    flag_check(a, "B_fc", vFV, vFC, S_WS, sTAG, sCNT, sleep=1)
    if Ctx.stamps:
        a(f"s_mov_b32 s26, s{sCNT}")
    a.wait_vm()
    a("s_barrier")
    OF = 192
    oloads = [f"global_load_dwordx4 {vr(OF+4*h,4)}, v{vOLp}, {sr(sOL+2*(h//4),2)} offset:{(h%4-2)*2048} sc1" for h in range(16)]
    LEAD = getattr(Ctx, "lead", 8)
    for t in oloads[:LEAD]:
        a(t)
    stamp(a, 9)
    for h in range(16):
        checked(a, "B_o", h, oloads[:min(16, h + LEAD)], OF + 4 * h, 4, vT, sCNT)
        nxt = wrd(h + NPRE) if h + NPRE < 16 else []
        for ct in range(4):
            a(f"v_mfma_f32_16x16x32_bf16 {vr(AO+4*ct,4)}, {vr(WB[h%len(WB)]+4*ct,4)}, {vr(OF+4*h,4)}, {vr(AO+4*ct,4) if h else 0}")
            for t in nxt[2 * ct:2 * ct + 2]:
                a(t)
            if ct == 0 and h + LEAD < 16:
                a(oloads[h + LEAD])
    a(f"v_mov_b32 v{vT}, {FL_EB}")
    a(f"s_or_b32 s{sT0}, s2, s{sW}")
    a(f"s_cmp_lg_u32 s{sT0}, 0")
    a("s_cbranch_scc1 B_noep")
    a.raw("    s_mov_b64 exec, 1")
    a.raw(f"    global_store_dword v{vT}, v{vTAG}, {sr(S_WS,2)} sc1")
    a.raw("    s_mov_b64 exec, -1")
    a.raw("B_noep:")
    for ct in range(4):
        a(f"v_cvt_pk_bf16_f32 v{48+2*ct}, v{AO+4*ct}, v{AO+4*ct+1}")
        a(f"v_cvt_pk_bf16_f32 v{49+2*ct}, v{AO+4*ct+2}, v{AO+4*ct+3}")
        a(f"ds_write_b64 v{vOW}, {vr(48+2*ct,2)} offset:{32*ct}")
    a.wait_lg()
    a(f"ds_read_b128 {vr(56,4)}, v{vOR}")
    a(f"ds_read_b128 {vr(60,4)}, v{vOR} offset:{8*144}")
    a(f"global_store_dwordx4 v{vOGp}, {vr(56,4)}, {sr(sOG,2)}")
    a(f"global_store_dwordx4 v{vOGp}, {vr(60,4)}, {sr(sOG+2,2)}")
    if Ctx.stamps or getattr(Ctx, "dfrom", None) is not None:
        a.wait_vm()
    stamp(a, 10)
    write_stamps(a, 11, 64, extra=(26, 27, sCNT))
    a("s_endpgm")
    flush_stubs(a)
```

```python
from emit import *

KNAME = "concat_heads__ssm_conv_s4__linear_kernel_hedgehog__prompt_kernel"

S_U, S_ARE, S_AIM, S_BRE, S_BIM, S_CRE, S_CIM, S_LDT = 4, 6, 8, 10, 12, 14, 16, 18
S_DSK, S_X, S_W, S_WPHI, S_WO, S_OUT, S_DBG, S_WS = 20, 22, 24, 26, 28, 30, 32, 34

WS_UT = 0
WS_YT = 2 << 20
WS_O = 4 << 20
WS_KVP = 6 << 20
KVP_STRIDE = 4096
WS_FL = 7 << 20
FL_FU = WS_FL + 65536
FL_FY = WS_FL + 4096
FL_FK = WS_FL + 8192
FL_FO = WS_FL + 12288
FL_EB = WS_FL + 16384
FL_EA = WS_FL + 16384 + 128
FL_FC = WS_FL + 32768
WS_DBG = 8 << 20

TAG_MUL = 0x9E3779B1
TAG_ADD = 0x7F4A7C15
SPIN_MAX = 400000


class Ctx:
    stamps = False
    dump = None


def poll_flags_old(a, name, vaddr, vtmp, sbase, stag, scnt, sleep=1):
    a.wait_vm()
    a(f"s_mov_b32 s{scnt}, 0")
    a.label(f"{name}_spin")
    a.raw(f"    global_load_dword v{vtmp}, v{vaddr}, {sr(sbase, 2)} sc1")
    a.raw(f"    s_add_u32 s{scnt}, s{scnt}, 1")
    a.raw(f"    s_cmp_gt_u32 s{scnt}, {SPIN_MAX}")
    a.raw(f"    s_cbranch_scc1 {name}_done")
    a.raw(f"    s_waitcnt vmcnt(0)")
    a.raw(f"    v_cmp_ne_u32 vcc, s{stag}, v{vtmp}")
    a.raw(f"    s_nop 1")
    a.raw(f"    s_cbranch_vccz {name}_done")
    if sleep:
        a.raw(f"    s_sleep {sleep}")
    a.raw(f"    s_branch {name}_spin")
    a.raw(f"{name}_done:")
    a.raw(f"    s_waitcnt vmcnt(0)")
    a.forget_vm = True
    a.vm = []


def store_flag(a, vaddr, vtag, sbase):
    a("s_mov_b64 exec, 1")
    a(f"global_store_dword v{vaddr}, v{vtag}, {sr(sbase, 2)} sc1")
    a("s_mov_b64 exec, -1")


def fine(a, grp, idx, sbase=80):
    if Ctx.stamps and getattr(Ctx, "grp", 0) == grp:
        a.raw(f"    s_memtime {sr(sbase + 2 * idx, 2)}")


def stamp(a, idx, sbase=80):
    if Ctx.stamps and (idx == 0 or getattr(Ctx, "grp", 0) == 0):
        a(f"{'s_memtime' if Ctx.stamps == 'clk' else 's_memrealtime'} {sr(sbase + 2 * idx, 2)}")
        a.wait_lg()


def write_stamps(a, n, vt, sbase=80, extra=()):
    if not Ctx.stamps:
        return
    a.wait_all()
    a.raw("    s_waitcnt lgkmcnt(0)")
    a(f"v_lshrrev_b32 v{vt}, 6, v0")
    a(f"v_lshlrev_b32 v{vt}, 6, v{vt}")
    a(f"s_lshl_b32 s3, s2, 8")
    a(f"s_add_u32 s3, s3, {WS_DBG}")
    a(f"v_add_u32 v{vt}, s3, v{vt}")
    a("s_mov_b64 exec, 1")
    for i in range(n):
        a(f"v_mov_b32 v{vt + 1}, s{sbase + 2 * i}")
        a(f"global_store_dword v{vt}, v{vt + 1}, {sr(S_WS, 2)} offset:{4 * i}")
    for i, e in enumerate(extra):
        a(f"v_mov_b32 v{vt + 1}, s{e}")
        a(f"global_store_dword v{vt}, v{vt + 1}, {sr(S_WS, 2)} offset:{4 * (n + i)}")
    a("s_mov_b64 exec, -1")


def interleave(a, groups, fill, per):
    fill = list(fill)
    for g in groups:
        for t in g:
            a(t)
        for _ in range(per):
            if fill:
                a(fill.pop(0))
    return fill


class Retry:
    stubs = []


def checked(a, name, k, loads, regs, n, vtmp, scnt, sleep=0):
    if n == 4:
        a(f"v_max3_u32 v{vtmp}, v{regs}, v{regs+1}, v{regs+2}")
        a(f"v_max_u32 v{vtmp}, v{vtmp}, v{regs+3}")
    else:
        a(f"v_max3_u32 v{vtmp}, v{regs}, v{regs+1}, v{regs+2}")
    a(f"v_cmp_eq_u32 vcc, -1, v{vtmp}")
    a(f"s_cbranch_vccnz {name}_r{k}")
    a.raw(f"{name}_k{k}:")
    st = [f"{name}_r{k}:"]
    if sleep:
        st += [f"    s_sleep {sleep}"]
    st += ["    " + t for t in loads[k:]]
    st += [f"    s_add_u32 s{scnt}, s{scnt}, 1",
           f"    s_cmp_gt_u32 s{scnt}, {SPIN_MAX}",
           f"    s_waitcnt vmcnt(0)",
           f"    s_cbranch_scc1 {name}_k{k}",
           f"    v_max3_u32 v{vtmp}, v{regs}, v{regs+1}, v{regs+2}"]
    if n == 4:
        st += [f"    v_max_u32 v{vtmp}, v{vtmp}, v{regs+3}"]
    st += [f"    v_cmp_eq_u32 vcc, -1, v{vtmp}",
           f"    s_nop 1",
           f"    s_cbranch_vccnz {name}_r{k}",
           f"    s_branch {name}_k{k}"]
    Retry.stubs.append("\n".join(st))


def flag_check(a, name, vval, vaddr, sbase, stag, scnt, sleep=2):
    a(f"v_cmp_ne_u32 vcc, s{stag}, v{vval}")
    a(f"s_cbranch_vccnz {name}_r")
    a.raw(f"{name}_k:")
    Retry.stubs.append("\n".join([
        f"{name}_r:",
        f"    s_sleep {sleep}",
        f"    global_load_dword v{vval}, v{vaddr}, {sr(sbase,2)} sc1",
        f"    s_add_u32 s{scnt}, s{scnt}, 1",
        f"    s_cmp_gt_u32 s{scnt}, {SPIN_MAX}",
        "    s_waitcnt vmcnt(0)",
        f"    s_cbranch_scc1 {name}_k",
        f"    v_cmp_ne_u32 vcc, s{stag}, v{vval}",
        "    s_nop 1",
        f"    s_cbranch_vccnz {name}_r",
        f"    s_branch {name}_k"]))


def flush_stubs(a):
    for s in Retry.stubs:
        a.raw(s)
    Retry.stubs.clear()


def sbase(a, dst, src, soff):
    a(f"s_add_u32 s{dst}, s{src}, s{soff}")
    a(f"s_addc_u32 s{dst+1}, s{src+1}, 0")
```

```python
import sys
from gen_common import *
import gen_a
try:
    import gen_b
except ImportError:
    gen_b = None

HEADER = open("concat_heads__ssm_conv_s4__linear_kernel_hedgehog__prompt.s.ref").read().split("; @launch")[0]

def generate(do_a=True, do_b=True, prefetch=True):
    a = Asm()
    stamp(a, 0)
    a("s_cmp_ge_u32 s2, 512")
    a("s_cbranch_scc1 K_end")
    a("s_load_dwordx16 s[4:19], s[0:1], 0")
    a("s_load_dwordx16 s[20:35], s[0:1], 64")
    if prefetch:
        a("s_getpc_b64 s[36:37]")
        a("s_and_b32 s36, s36, 0xffffff00")
        a("s_lshr_b32 s38, s2, 3")
        a("s_lshl_b32 s38, s38, 9")
        a("v_lshrrev_b32 v1, 6, v0")
        a("v_lshl_add_u32 v1, v1, 7, s38")
        a("v_min_u32 v1, CODE_BYTES-4, v1")
        a("s_mov_b64 exec, 1")
        a("global_load_dword v255, v1, s[36:37]")
        a("s_mov_b64 exec, -1")
    if getattr(Ctx, "spf", 0):
        a("v_lshrrev_b32 v1, 6, v0")
        a("s_getpc_b64 s[36:37]")
        a("v_readfirstlane_b32 s39, v1")
        a("s_and_b32 s36, s36, 0xffffff00")
        a("s_lshr_b32 s38, s2, 3")
        a("s_lshl_b32 s38, s38, 2")
        a("s_add_u32 s38, s38, s39")
        a("s_lshl_b32 s38, s38, 7")
        a("s_min_u32 s38, s38, CODE_BYTES-4")
        a("s_load_dword s3, s[36:37], s38")
    if getattr(Ctx, "touch", False):
        a.wait_lg()
        a("v_lshlrev_b32 v2, 15, v0")
        a("v_and_b32 v2, 0x3fffff, v2")
        a("global_load_dword v254, v2, s[30:31]")
        a("v_and_b32 v2, 0x7ffff, v2")
        a("global_load_dword v253, v2, s[28:29]")
        a("v_lshlrev_b32 v2, 15, v0")
        a("global_load_dword v252, v2, s[34:35]")
    a("s_cmp_ge_u32 s2, 256")
    a("s_cbranch_scc1 K_conv")
    lg, vm = list(a.lg), list(a.vm)
    if do_b and gen_b:
        gen_b.gen_b(a)
    else:
        a("s_endpgm")
    a.label("K_conv")
    a.lg, a.vm = list(lg), list(vm)
    if do_a:
        gen_a.gen_a(a)
    a.raw("K_end:")
    a.raw("    s_endpgm")
    a.raw("K_last:")
    import align
    body = '\n'.join(align.align(a.out)) + '\n' if getattr(Ctx, 'align', True) else a.text()
    txt = HEADER + f"""; @launch grid=(512,1,1) block=(256,1,1) lds=81920
.amdgcn_target "amdgcn-amd-amdhsa--gfx950"
.text
.globl {KNAME}
.p2align 8
.type {KNAME},@function
{KNAME}:
.set CODE_BYTES, K_last-{KNAME}
{body}
.section .rodata,"a"
.p2align 6
.amdhsa_kernel {KNAME}
  .amdhsa_next_free_vgpr 256
  .amdhsa_next_free_sgpr 102
  .amdhsa_accum_offset {getattr(Ctx,'accum',256)}
  .amdhsa_group_segment_fixed_size 0
  .amdhsa_kernarg_size 128
  .amdhsa_user_sgpr_count 2
  .amdhsa_user_sgpr_kernarg_segment_ptr 1
  .amdhsa_system_sgpr_workgroup_id_x 1
.end_amdhsa_kernel
"""
    return txt, a

if __name__ == "__main__":
    out = sys.argv[1]
    Ctx.stamps = "clk" if "clk" in sys.argv else ("stamps" in sys.argv)
    Ctx.rot = "norot" not in sys.argv
    Ctx.touch = "touch" in sys.argv
    for x in sys.argv:
        if "=" in x:
            k, v = x.split("="); setattr(Ctx, k, int(v))
    Ctx.align = "noalign" not in sys.argv
    txt, a = generate(do_a="noa" not in sys.argv, do_b="nob" not in sys.argv, prefetch="pf" in sys.argv)
    open(out, "w").write(txt)
    print("instructions", a.count, "nop states", a.nops)
```

```python
from emit import *

KNAME = "concat_heads__ssm_conv_s4__linear_kernel_hedgehog__prompt_kernel"

S_U, S_ARE, S_AIM, S_BRE, S_BIM, S_CRE, S_CIM, S_LDT = 4, 6, 8, 10, 12, 14, 16, 18
S_DSK, S_X, S_W, S_WPHI, S_WO, S_OUT, S_DBG, S_WS = 20, 22, 24, 26, 28, 30, 32, 34

WS_UT = 0
WS_YT = 2 << 20
WS_O = 4 << 20
WS_KVP = 6 << 20
KVP_STRIDE = 4096
WS_FL = 7 << 20
FL_FU = WS_FL + 65536
FL_FY = WS_FL + 4096
FL_FK = WS_FL + 8192
FL_FO = WS_FL + 12288
FL_EB = WS_FL + 16384
FL_EA = WS_FL + 16384 + 128
FL_FC = WS_FL + 32768
WS_DBG = 8 << 20

TAG_MUL = 0x9E3779B1
TAG_ADD = 0x7F4A7C15
SPIN_MAX = 400000


class Ctx:
    stamps = False
    dump = None


def poll_flags_old(a, name, vaddr, vtmp, sbase, stag, scnt, sleep=1):
    a.wait_vm()
    a(f"s_mov_b32 s{scnt}, 0")
    a.label(f"{name}_spin")
    a.raw(f"    global_load_dword v{vtmp}, v{vaddr}, {sr(sbase, 2)} sc1")
    a.raw(f"    s_add_u32 s{scnt}, s{scnt}, 1")
    a.raw(f"    s_cmp_gt_u32 s{scnt}, {SPIN_MAX}")
    a.raw(f"    s_cbranch_scc1 {name}_done")
    a.raw(f"    s_waitcnt vmcnt(0)")
    a.raw(f"    v_cmp_ne_u32 vcc, s{stag}, v{vtmp}")
    a.raw(f"    s_nop 1")
    a.raw(f"    s_cbranch_vccz {name}_done")
    if sleep:
        a.raw(f"    s_sleep {sleep}")
    a.raw(f"    s_branch {name}_spin")
    a.raw(f"{name}_done:")
    a.raw(f"    s_waitcnt vmcnt(0)")
    a.forget_vm = True
    a.vm = []


def store_flag(a, vaddr, vtag, sbase):
    a("s_mov_b64 exec, 1")
    a(f"global_store_dword v{vaddr}, v{vtag}, {sr(sbase, 2)} sc1")
    a("s_mov_b64 exec, -1")


def fine(a, grp, idx, sbase=80):
    if Ctx.stamps and getattr(Ctx, "grp", 0) == grp:
        a.raw(f"    s_memtime {sr(sbase + 2 * idx, 2)}")


def stamp(a, idx, sbase=80):
    diag_mark(a, idx)
    if Ctx.stamps and (idx == 0 or getattr(Ctx, "grp", 0) == 0):
        a(f"{'s_memtime' if Ctx.stamps == 'clk' else 's_memrealtime'} {sr(sbase + 2 * idx, 2)}")
        a.wait_lg()


def write_stamps(a, n, vt, sbase=80, extra=()):
    diag_end(a, "D%d" % vt)
    if not Ctx.stamps:
        return
    a.wait_all()
    a.raw("    s_waitcnt lgkmcnt(0)")
    a(f"v_lshrrev_b32 v{vt}, 6, v0")
    a(f"v_lshlrev_b32 v{vt}, 6, v{vt}")
    a(f"s_lshl_b32 s3, s2, 8")
    a(f"s_add_u32 s3, s3, {WS_DBG}")
    a(f"v_add_u32 v{vt}, s3, v{vt}")
    a("s_mov_b64 exec, 1")
    for i in range(n):
        a(f"v_mov_b32 v{vt + 1}, s{sbase + 2 * i}")
        a(f"global_store_dword v{vt}, v{vt + 1}, {sr(S_WS, 2)} offset:{4 * i}")
    for i, e in enumerate(extra):
        a(f"v_mov_b32 v{vt + 1}, s{e}")
        a(f"global_store_dword v{vt}, v{vt + 1}, {sr(S_WS, 2)} offset:{4 * (n + i)}")
    a("s_mov_b64 exec, -1")


def interleave(a, groups, fill, per):
    fill = list(fill)
    for g in groups:
        for t in g:
            a(t)
        for _ in range(per):
            if fill:
                a(fill.pop(0))
    return fill


class Retry:
    stubs = []


def checked(a, name, k, loads, regs, n, vtmp, scnt, sleep=0):
    if n == 4:
        a(f"v_max3_u32 v{vtmp}, v{regs}, v{regs+1}, v{regs+2}")
        a(f"v_max_u32 v{vtmp}, v{vtmp}, v{regs+3}")
    else:
        a(f"v_max3_u32 v{vtmp}, v{regs}, v{regs+1}, v{regs+2}")
    a(f"v_cmp_eq_u32 vcc, -1, v{vtmp}")
    a(f"s_cbranch_vccnz {name}_r{k}")
    a.raw(f"{name}_k{k}:")
    st = [f"{name}_r{k}:"]
    if sleep:
        st += [f"    s_sleep {sleep}"]
    st += ["    " + t for t in loads[k:]]
    st += [f"    s_add_u32 s{scnt}, s{scnt}, 1",
           f"    s_cmp_gt_u32 s{scnt}, {SPIN_MAX}",
           f"    s_waitcnt vmcnt(0)",
           f"    s_cbranch_scc1 {name}_k{k}",
           f"    v_max3_u32 v{vtmp}, v{regs}, v{regs+1}, v{regs+2}"]
    if n == 4:
        st += [f"    v_max_u32 v{vtmp}, v{vtmp}, v{regs+3}"]
    st += [f"    v_cmp_eq_u32 vcc, -1, v{vtmp}",
           f"    s_nop 1",
           f"    s_cbranch_vccnz {name}_r{k}",
           f"    s_branch {name}_k{k}"]
    Retry.stubs.append("\n".join(st))


def flag_check(a, name, vval, vaddr, sbase, stag, scnt, sleep=2):
    a(f"v_cmp_ne_u32 vcc, s{stag}, v{vval}")
    a(f"s_cbranch_vccnz {name}_r")
    a.raw(f"{name}_k:")
    Retry.stubs.append("\n".join([
        f"{name}_r:",
        f"    s_sleep {sleep}",
        f"    global_load_dword v{vval}, v{vaddr}, {sr(sbase,2)} sc1",
        f"    s_add_u32 s{scnt}, s{scnt}, 1",
        f"    s_cmp_gt_u32 s{scnt}, {SPIN_MAX}",
        "    s_waitcnt vmcnt(0)",
        f"    s_cbranch_scc1 {name}_k",
        f"    v_cmp_ne_u32 vcc, s{stag}, v{vval}",
        "    s_nop 1",
        f"    s_cbranch_vccnz {name}_r",
        f"    s_branch {name}_k"]))


def flush_stubs(a):
    for s in Retry.stubs:
        a.raw(s)
    Retry.stubs.clear()


def sbase(a, dst, src, soff):
    a(f"s_add_u32 s{dst}, s{src}, s{soff}")
    a(f"s_addc_u32 s{dst+1}, s{src+1}, 0")


def diag_mark(a, idx):
    d = getattr(Ctx, "dfrom", None)
    if d is None:
        return
    if idx == Ctx.dfrom:
        a("s_memrealtime s[98:99]")
        a.wait_lg()
    if idx == Ctx.dto:
        a("s_memrealtime s[100:101]")
        a.wait_lg()


def diag_end(a, name):
    d = getattr(Ctx, "dfrom", None)
    if d is None:
        return
    a.wait_all()
    a("s_sub_u32 s100, s100, s98")
    a(f"s_mul_i32 s100, s100, {getattr(Ctx, 'dmul', 1)}")
    a("s_memrealtime s[96:97]")
    a.wait_lg()
    a("s_add_u32 s100, s100, s96")
    a.raw(f"{name}_dg:")
    a.raw("    s_memrealtime s[96:97]")
    a.raw("    s_waitcnt lgkmcnt(0)")
    a.raw("    s_sub_u32 s96, s96, s100")
    a.raw("    s_cmp_lt_i32 s96, 0")
    a.raw(f"    s_cbranch_scc1 {name}_dg")
```

```python
from gen_common import *

CH = 32768
CS = 4160
RED = 16640
YRE = RED + 8192
UB = 0
UL = 4608
CB0 = 2 * UL

sA, sCG, sJ, sW, sC, sMH, sT0, sT1, sT2, sTAG, sCNT, sLD, sDS, sE = 36, 37, 38, 39, 40, 41, 42, 43, 44, 45, 46, 47, 48, 49
sPE, sPO, sK0, sK1, sUB, sCB = 50, 51, 52, 53, 54, 55
sM0, sM1, sM2 = 56, 58, 60
sK2 = 62


def cmul(a, d, x, y, t):
    a(f"v_pk_mul_f32 {vr(t,2)}, {vr(x,2)}, {vr(y,2)} op_sel:[1,1] op_sel_hi:[1,0] neg_lo:[0,1]")
    a(f"v_pk_fma_f32 {vr(d,2)}, {vr(x,2)}, {vr(y,2)}, {vr(t,2)} op_sel:[0,0,0] op_sel_hi:[0,1,1]")


def transpose(a, r0, r1, tmp, vw, vr0, vr1, dst, tb):
    for i in range(8):
        a(f"v_perm_b32 v{tmp+i}, v{r1+i//2}, v{r0+i//2}, s{sPO if i & 1 else sPE}")
        a(f"ds_write_b32 v{vw}, v{tmp+i} offset:{tb + i*128}")
    a.wait_lg()
    a("s_barrier")
    a(f"ds_read_b128 {vr(dst,4)}, v{vr0} offset:{tb}")
    a(f"ds_read_b128 {vr(dst+4,4)}, v{vr1} offset:{tb}")


def gen_a(a):
    vL, vM, vP = 1, 2, 3
    vTW, vTR0, vTR1 = 4, 5, 6
    vT, vT2, vT3, vTAG = 7, 8, 9, 10
    (vS0, vS1, vFU, vFP, vUG, vYC, vK, vK3, vKB, vUW, vUZ, vCA, vCB, vRW, vRR, vUS, vYW, vYR,
     vY0, vY1, vO0, vO1, vSR0, vSR1, vFV) = range(200, 225)
    vSW = 226
    M1 = 236
    ZR = 240
    a("s_setprio 2")
    a(f"s_sub_u32 s{sA}, s2, 256")
    a(f"s_and_b32 s{sCG}, s{sA}, 7")
    a(f"s_lshr_b32 s{sJ}, s{sA}, 3")
    a(f"v_lshrrev_b32 v{vT}, 6, v0")
    a(f"v_and_b32 v{vL}, 63, v0")
    a(f"v_readfirstlane_b32 s{sW}, v{vT}")
    a(f"v_lshrrev_b32 v{vM}, 3, v{vL}")
    a(f"v_and_b32 v{vP}, 7, v{vL}")
    a(f"s_lshl_b32 s{sT0}, s{sJ}, 16")
    a(f"s_lshl_b32 s{sT1}, s{sW}, 14")
    a(f"s_add_u32 s{sT0}, s{sT0}, s{sT1}")
    a(f"s_lshl_b32 s{sT1}, s{sCG}, 7")
    a(f"s_add_u32 s{sT0}, s{sT0}, s{sT1}")
    a(f"v_lshlrev_b32 v{vT3}, 11, v{vM}")
    a(f"v_lshl_add_u32 v{vT3}, v{vP}, 4, v{vT3}")
    a(f"v_add_u32 v{vT}, s{sT0}, v{vT3}")
    a(f"s_lshl_b32 s{sA}, s{sCG}, 6")
    a(f"s_lshl_b32 s{sT2}, s{sJ}, 1")
    a(f"s_add_u32 s{sA}, s{sA}, s{sT2}")
    a(f"s_lshl_b32 s{sT2}, s{sA}, 1")
    a(f"s_lshl_b32 s{sT0}, s{sA}, 8")
    a(f"s_lshl_b32 s{sC}, s{sW}, 7")
    a(f"s_add_u32 s{sT0}, s{sT0}, s{sC}")
    a(f"v_lshl_add_u32 v{vT2}, v{vL}, 1, s{sT0}")
    a(f"s_add_u32 s{sT1}, s{sT1}, {FL_EA}")
    fine(a, 1, 1)
    a.wait_lg()
    fine(a, 1, 2)
    R0, R1 = 12, 16
    a(f"global_load_dwordx4 {vr(R0,4)}, v{vT}, {sr(S_U,2)}")
    a(f"global_load_dwordx4 {vr(R1,4)}, v{vT}, {sr(S_U,2)} offset:1024")
    a(f"s_load_dword s{sE}, {sr(S_WS,2)}, s{sT1}")
    a(f"s_load_dword s{sLD}, {sr(S_LDT,2)}, s{sT2}")
    a(f"s_load_dword s{sDS}, {sr(S_DSK,2)}, s{sT2}")
    PAR = 32
    for k, s in enumerate((S_ARE, S_AIM, S_BRE, S_BIM, S_CRE, S_CIM)):
        a(f"global_load_ushort v{PAR+k}, v{vT2}, {sr(s,2)}")
    code_prefetch(a, sW, 64, "A")
    fine(a, 1, 3)
    a(f"s_lshr_b32 s{sC}, s{sW}, 1")
    a(f"s_and_b32 s{sMH}, s{sW}, 1")
    a(f"s_mul_i32 s{sUB}, s{sC}, {UL}")
    a(f"s_lshl_b32 s{sCB}, s{sC}, 15")
    a(f"s_add_u32 s{sCB}, s{sCB}, {CB0}")
    a(f"s_lshl_b32 s{sT0}, s{sJ}, 17")
    a(f"s_lshl_b32 s{sT1}, s{sW}, 15")
    a(f"s_add_u32 s{sT0}, s{sT0}, s{sT1}")
    a(f"s_lshl_b32 s{sT1}, s{sCG}, 7")
    a(f"s_add_u32 s{sT0}, s{sT0}, s{sT1}")
    a(f"v_add_u32 v{vO0}, s{sT0}, v{vT3}")
    a(f"v_add_u32 v{vO1}, 0x4000, v{vO0}")
    a(f"s_mov_b32 s{sPE}, 0x05040100")
    a(f"s_mov_b32 s{sPO}, 0x07060302")
    a(f"v_lshrrev_b32 v{vT}, 2, v{vM}")
    a(f"s_lshl_b32 s{sT0}, s{sW}, 1")
    a(f"v_add_u32 v{vT}, s{sT0}, v{vT}")
    a(f"v_xor_b32 v{vT}, v{vT}, v{vP}")
    a(f"v_lshlrev_b32 v{vT}, 4, v{vT}")
    a(f"v_lshl_add_u32 v{vT}, v{vP}, 10, v{vT}")
    a(f"v_and_b32 v{vT3}, 3, v{vM}")
    a(f"v_lshl_add_u32 v{vTW}, v{vT3}, 2, v{vT}")
    a(f"v_xor_b32 v{vT}, s{sT0}, v{vP}")
    a(f"v_lshlrev_b32 v{vT}, 4, v{vT}")
    a(f"v_lshl_add_u32 v{vT}, v{vM}, 7, v{vT}")
    a(f"s_lshl_b32 s{sT1}, s{sW}, 11")
    a(f"v_add_u32 v{vTR0}, s{sT1}, v{vT}")
    a(f"v_xor_b32 v{vTR1}, 16, v{vTR0}")
    a(f"v_add_u32 v{vTR1}, 1024, v{vTR1}")
    a(f"s_lshl_b32 s{sT0}, s{sCG}, 18")
    a(f"s_lshl_b32 s{sT1}, s{sW}, 16")
    a(f"s_add_u32 s{sT0}, s{sT0}, s{sT1}")
    a(f"s_lshl_b32 s{sT1}, s{sJ}, 7")
    a(f"s_add_u32 s{sT0}, s{sT0}, s{sT1}")
    a(f"v_lshlrev_b32 v{vT}, 4, v{vP}")
    a(f"v_add_u32 v{vT}, s{sT0}, v{vT}")
    a(f"v_lshl_add_u32 v{vS0}, v{vM}, 12, v{vT}")
    a(f"v_add_u32 v{vS1}, 0x8000, v{vS0}")
    a(f"v_lshl_add_u32 v{vY0}, v{vM}, 13, v{vT}")
    a(f"v_add_u32 v{vY0}, {WS_YT}, v{vY0}")
    a(f"v_add_u32 v{vY1}, 0x1000, v{vY0}")
    a(f"s_lshl_b32 s{sT0}, s{sA}, 12")
    a(f"s_lshl_b32 s{sT1}, s{sW}, 11")
    a(f"s_add_u32 s{sT1}, s{sT0}, s{sT1}")
    a(f"v_lshl_add_u32 v{vUG}, v{vL}, 4, s{sT1}")
    a(f"s_lshl_b32 s{sT0}, s{sCG}, 14")
    a(f"s_add_u32 s{sT0}, s{sT0}, {FL_FY}")
    a(f"s_lshl_b32 s{sT1}, s{sMH}, 1")
    a(f"s_add_u32 s{sT1}, s{sT1}, s{sC}")
    a(f"s_lshl_b32 s{sT1}, s{sT1}, 5")
    a(f"s_add_u32 s{sT1}, s{sT1}, s{sJ}")
    a(f"s_lshl_b32 s{sT1}, s{sT1}, 7")
    a(f"s_add_u32 s{sT1}, s{sT1}, s{sT0}")
    a(f"v_mov_b32 v{vYC}, s{sT1}")
    a(f"s_lshr_b32 s{sT1}, s{sJ}, 4")
    a(f"s_lshl_b32 s{sT1}, s{sT1}, 13")
    a(f"s_add_u32 s{sT0}, s{sT0}, s{sT1}")
    a(f"s_lshl_b32 s{sT1}, s{sW}, 10")
    a(f"s_add_u32 s{sT0}, s{sT0}, s{sT1}")
    a(f"v_and_b32 v{vT}, 1, v{vM}")
    a(f"v_lshlrev_b32 v{vT}, 12, v{vT}")
    a(f"v_lshl_add_u32 v{vT}, v{vP}, 7, v{vT}")
    a(f"v_add_u32 v{M1}, s{sT0}, v{vT}")
    a(f"s_lshl_b32 s{sT0}, s{sCG}, 14")
    a(f"s_add_u32 s{sT0}, s{sT0}, {FL_FU}")
    a(f"s_lshl_b32 s{sT1}, s{sW}, 12")
    a(f"s_lshl_b32 s{sT2}, s{sJ}, 7")
    a(f"s_add_u32 s{sT1}, s{sT1}, s{sT2}")
    a(f"s_add_u32 s{sT1}, s{sT1}, s{sT0}")
    a(f"v_mov_b32 v{vFU}, s{sT1}")
    a(f"s_lshr_b32 s{sT1}, s{sJ}, 3")
    a(f"s_lshl_b32 s{sT1}, s{sT1}, 12")
    a(f"s_add_u32 s{sT0}, s{sT0}, s{sT1}")
    a(f"s_lshl_b32 s{sT1}, s{sW}, 10")
    a(f"s_add_u32 s{sT0}, s{sT0}, s{sT1}")
    a(f"v_lshl_add_u32 v{vFP}, v{vP}, 7, s{sT0}")
    a(f"s_lshl_b32 s{sT0}, s{sMH}, 13")
    a(f"s_add_u32 s{sT0}, s{sT0}, s{sCB}")
    a(f"v_lshlrev_b32 v{vT}, 4, v{vP}")
    a(f"v_lshl_add_u32 v{vT}, v{vL}, 7, v{vT}")
    a(f"v_add_u32 v{vSW}, s{sT0}, v{vT}")
    for q in range(1, 8):
        a(f"v_xor_b32 v{vSW+q}, {16*q}, v{vSW}")
    for k in range(4):
        a(f"v_mov_b32 v{ZR+k}, 0")
    fine(a, 1, 4)
    a.wait_lg()
    fine(a, 1, 5)
    if getattr(Ctx, "grp", 0) == 1:
        a("v_mov_b32 v250, v12")
        a("v_mov_b32 v250, v16")
        fine(a, 1, 6)
    a(f"s_mul_i32 s{sTAG}, s{sE}, {TAG_MUL}")
    a(f"s_add_u32 s{sTAG}, s{sTAG}, {TAG_ADD}")
    a(f"v_mov_b32 v{vTAG}, s{sTAG}")
    a(f"s_mov_b32 s{sCNT}, 0")
    stamp(a, 1)
    transpose(a, R0, R1, 20, vTW, vTR0, vTR1, 12, UB)
    a(f"global_store_dwordx4 v{vS0}, {vr(12,4)}, {sr(S_WS,2)} sc1")
    a(f"global_store_dwordx4 v{vS1}, {vr(16,4)}, {sr(S_WS,2)} sc1")
    a("s_setprio 0")
    a.out.append("@CUT")
    fine(a, 1, 7)
    stamp(a, 2)

    a(f"s_lshl_b32 s{sT0}, s{sC}, 4")
    a(f"s_lshr_b32 s{sLD}, s{sLD}, s{sT0}")
    a(f"s_lshl_b32 s{sLD}, s{sLD}, 16")
    a(f"s_lshr_b32 s{sDS}, s{sDS}, s{sT0}")
    a(f"s_lshl_b32 s{sDS}, s{sDS}, 16")
    a(f"s_mov_b32 s{sK0}, 0x3fb8aa3b")
    a(f"s_mov_b32 s{sK1}, 0x32a57060")
    a(f"s_mov_b32 s{sK2}, 0x3f317218")
    vDT, vA, vB_ = 20, 21, 22
    a(f"v_mov_b32 v{vT3}, s{sLD}")
    a(f"v_mul_f32 v{vT}, s{sK0}, v{vT3}")
    a(f"v_fma_f32 v{vT2}, v{vT3}, s{sK0}, -v{vT}")
    a(f"v_fma_f32 v{vT2}, v{vT3}, s{sK1}, v{vT2}")
    a(f"v_exp_f32 v{vT}, v{vT}")
    a(f"v_mul_f32 v{vT2}, s{sK2}, v{vT2}")
    a(f"v_fma_f32 v{vT}, v{vT}, v{vT2}, v{vT}")
    a(f"v_cvt_pk_bf16_f32 v{vT}, v{vT}, v{vT}")
    a(f"v_lshlrev_b32 v{vDT}, 16, v{vT}")
    for k in range(6):
        a(f"v_lshlrev_b32 v{PAR+k}, 16, v{PAR+k}")
    a(f"v_mul_f32 v{vA}, v{vDT}, v{PAR}")
    a(f"v_mul_f32 v{vB_}, v{vDT}, v{PAR+1}")
    a(f"v_mul_f32 v{PAR+2}, v{vDT}, v{PAR+2}")
    a(f"v_mul_f32 v{PAR+3}, v{vDT}, v{PAR+3}")
    a(f"v_mul_f32 v{vA}, s{sK0}, v{vA}")
    a(f"v_mul_f32 v{vB_}, 0.15915494, v{vB_}")
    Z1, W8, Z256 = 40, 42, 44
    E3, P3 = 23, 46
    for k, tau in enumerate((1.0, 8.0, 256.0)):
        if k == 0:
            a(f"v_exp_f32 v{E3}, v{vA}")
            a(f"v_fract_f32 v{P3}, v{vB_}")
        else:
            lit = {8.0: "0x41000000", 256.0: "0x43800000"}[tau]
            a(f"v_mul_f32 v{E3+k}, {lit}, v{vA}")
            a(f"v_mul_f32 v{P3+k}, {lit}, v{vB_}")
            a(f"v_exp_f32 v{E3+k}, v{E3+k}")
            a(f"v_fract_f32 v{P3+k}, v{P3+k}")
    for k, z in enumerate((Z1, W8, Z256)):
        a(f"v_cos_f32 v{z}, v{P3+k}")
        a(f"v_sin_f32 v{z+1}, v{P3+k}")
    for k, z in enumerate((Z1, W8, Z256)):
        a(f"v_mul_f32 v{z}, v{E3+k}, v{z}")
        if z == W8:
            a(f"v_mul_f32_e64 v{z+1}, -v{E3+k}, v{z+1}")
        else:
            a(f"v_mul_f32 v{z+1}, v{E3+k}, v{z+1}")
    XB = 50
    XR_, XI, YR_, YI = 112, 128, 144, 160
    xreg = {}
    slot = {}
    for t in range(11):
        slot[t] = (0, t)
    for k, o in enumerate((0, 2, 4, 6, 8, 10)):
        slot[256 + o] = (1, k)
    for k, o in enumerate((0, 4, 8)):
        slot[512 + o] = (1, 6 + k)
        slot[768 + o] = (1, 9 + k)
    for B, h, r in ((1024, 0, 12), (1280, 0, 14), (1536, 1, 12), (1792, 1, 14)):
        slot[B] = (h, r)
        slot[B + 8] = (h, r + 1)
    col = {key: 8 * (r >> 2) + 4 * h + (r & 3) for key, (h, r) in slot.items()}
    bycol = {c: key for key, c in col.items()}
    xops = [(0, None, None)]
    xops += [(t, t - 1, Z1) for t in range(1, 7)]
    xops += [(256 + o, o, Z256) for o in (0, 2, 4, 6)]
    xops += [(t, t - 1, Z1) for t in range(7, 11)]
    xops += [(256 + o, o, Z256) for o in (8, 10)]
    xops += [(512 + o, 256 + o, Z256) for o in (0, 4, 8)]
    xops += [(768 + o, 512 + o, Z256) for o in (0, 4, 8)]
    for B in (1024, 1280, 1536, 1792):
        xops += [(B + o, B - 256 + o, Z256) for o in (0, 8)]
    TX, TY, YA, YB = 26, 28, 30, 38
    a(f"v_cvt_pk_bf16_f32 v{YR_}, 1.0, v{W8}")
    a(f"v_cvt_pk_bf16_f32 v{YI}, 0, v{W8+1}")
    ycur = W8
    xdone = set()
    late = []
    late += [f"v_and_b32 v{vT}, 31, v{vL}", f"v_lshrrev_b32 v{vT2}, 5, v{vL}",
             f"v_lshlrev_b32 v{vK}, 4, v{vT}", f"s_add_u32 s{sT0}, s{sCB}, {4112 - 3584}",
             f"v_sub_u32 v{vK}, s{sT0}, v{vK}", f"v_lshlrev_b32 v{vT}, 10, v{vT2}",
             f"v_sub_u32 v{vK3}, v{vK}, v{vT}", f"v_mov_b32 v{vKB}, s{sCB}"]
    for n in range(31):
        key, src, z = xops[n]
        d = XB + 2 * n
        xreg[key] = d
        if src is None:
            cmul(a, d, PAR + 4, PAR + 2, TX)
        else:
            cmul(a, d, xreg[src], z, TX)
        if n < 30:
            yn = YA if n % 2 == 0 else YB
            cmul(a, yn, ycur, W8, TY)
            ycur = yn
        c = col[key]
        mate = bycol.get(c ^ 1)
        if mate is None or mate in xreg:
            lo = xreg[bycol[c & ~1]]
            hi = xreg[bycol.get(c | 1, key)]
            a(f"v_cvt_pk_bf16_f32 v{XR_+c//2}, v{lo}, v{hi}")
            a(f"v_cvt_pk_bf16_f32 v{XI+c//2}, v{lo+1}, v{hi+1}")
            xdone.add(c // 2)
            q = c // 8
            if all(4 * q + k in xdone for k in range(4)):
                a(f"ds_write_b128 v{vSW+q}, {vr(XR_+4*q,4)}")
                a(f"ds_write_b128 v{vSW+4+q}, {vr(XI+4*q,4)}")
        if n < 30 and n % 2 == 1:
            m = (n + 2) // 2
            a(f"v_cvt_pk_bf16_f32 v{YR_+m}, v{YA}, v{YB}")
            a(f"v_cvt_pk_bf16_f32 v{YI+m}, v{YA+1}, v{YB+1}")
            if m % 4 == 3:
                a(f"ds_write_b128 v{vSW+m//4}, {vr(YR_+m-3,4)} offset:16384")
                a(f"ds_write_b128 v{vSW+4+m//4}, {vr(YI+m-3,4)} offset:16384")
        if n == 20:
            a.comment("publish this wave's part of the transposed u tile")
            fine(a, 1, 8)
            a.wait_vm()
            fine(a, 1, 9)
            store_flag(a, vFU, vTAG, S_WS)
    assert XB + 62 <= XR_
    stamp(a, 3)
    fine(a, 1, 10)
    for t in late:
        a(t)
    a(f"v_bfe_u32 v{vT}, v{vL}, 3, 1")
    a(f"v_lshl_add_u32 v{vT}, v{vT2}, 2, v{vT}")
    a(f"v_bfe_u32 v{vT3}, v{vL}, 2, 1")
    a(f"v_bfe_u32 v20, v{vL}, 4, 1")
    a(f"v_lshl_add_u32 v{vT3}, v{vT3}, 1, v20")
    a(f"v_bfe_u32 v20, v{vL}, 1, 1")
    a(f"v_lshl_add_u32 v{vT3}, v{vT3}, 1, v20")
    a(f"v_xor_b32 v{vT3}, v{vT3}, v{vT}")
    a(f"v_lshlrev_b32 v{vT3}, 4, v{vT3}")
    a(f"v_lshl_add_u32 v{vT3}, v{vT}, 7, v{vT3}")
    a(f"v_and_b32 v20, 1, v{vL}")
    a(f"v_lshl_add_u32 v{vT3}, v20, 3, v{vT3}")
    a(f"v_add_u32 v{vSR0}, s{sCB}, v{vT3}")
    a(f"v_xor_b32 v{vSR1}, 32, v{vSR0}")
    a(f"v_add_u32 v{vSR1}, 256, v{vSR1}")
    a(f"global_load_dword v{vFV}, v{vFP}, {sr(S_WS,2)} sc1")
    a.wait_lg()
    a("s_barrier")
    D = 32
    FA, FB = 48, 80
    NPF = 4
    vN, vG = 20, 21
    fill = [
        f"v_and_b32 v{vN}, 15, v{vL}", f"v_lshrrev_b32 v{vG}, 4, v{vL}",
        f"v_sub_u32 v{vT}, 2, v{vN}", f"v_and_b32 v{vT}, 3, v{vT}",
        f"v_lshlrev_b32 v{vT2}, 3, v{vG}", f"v_sub_u32 v{vT2}, v{vT2}, v{vN}",
        f"v_sub_u32 v{vT2}, v{vT2}, v{vT}", f"v_mul_u32_u24 v{vT}, {CS}, v{vT}",
        f"s_lshl_b32 s{sT0}, s{sMH}, 8", f"s_sub_u32 s{sT1}, s{sCB}, s{sT0}",
        f"s_add_u32 s{sT1}, s{sT1}, {2*(2050-1792-96)}",
        f"v_lshl_add_u32 v{vCA}, v{vT2}, 1, v{vT}", f"v_add_u32 v{vCA}, s{sT1}, v{vCA}",
        f"s_sub_u32 s{sT1}, s{sUB}, s{sT0}", f"s_add_u32 s{sT1}, s{sT1}, {2*(256-16-96)}",
        f"v_lshlrev_b32 v{vT}, 5, v{vN}",
        f"v_lshl_add_u32 v{vCB}, v{vG}, 4, v{vT}", f"v_add_u32 v{vCB}, s{sT1}, v{vCB}",
        f"s_add_u32 s{sT1}, s{sUB}, s{sT0}", f"v_lshl_add_u32 v{vUZ}, v{vL}, 2, s{sT1}",
        f"s_lshl_b32 s{sT0}, s{sMH}, 11", f"s_add_u32 s{sT1}, s{sUB}, s{sT0}",
        f"v_lshl_add_u32 v{vUW}, v{vL}, 4, s{sT1}",
        f"v_lshl_add_u32 v{vT}, v{vG}, 3, v{vT}",
        f"v_add_u32 v{vUS}, s{sT1}, v{vT}",
        f"s_add_u32 s{sT1}, s{sCB}, s{sT0}", f"s_add_u32 s{sT1}, s{sT1}, {YRE}",
        f"v_add_u32 v{vYW}, s{sT1}, v{vT}", f"v_lshl_add_u32 v{vYR}, v{vL}, 4, s{sT1}",
        f"s_lshl_b32 s{sT0}, s{sMH}, 12", f"s_add_u32 s{sT1}, s{sCB}, {RED}",
        f"s_add_u32 s{sT2}, s{sT1}, s{sT0}", f"v_lshl_add_u32 v{vRW}, v{vL}, 4, s{sT2}",
        f"s_xor_b32 s{sT0}, s{sT0}, 4096", f"s_add_u32 s{sT2}, s{sT1}, s{sT0}",
        f"v_lshl_add_u32 v{vRR}, v{vL}, 4, s{sT2}",
        f"s_mov_b32 s{sM0}, 0x80000000", f"s_mov_b32 s{sM0+1}, 0", f"s_mov_b32 s{sM1}, 0",
        f"s_mov_b32 s{sM1+1}, 0x80000000", f"s_mov_b32 s{sM2}, 0xaaaaaaaa", f"s_mov_b32 s{sM2+1}, 0xaaaaaaaa",
    ]
    for st in range(16 + NPF):
        if st < 16:
            fa, fb = FA + 4 * (st % 8), FB + 4 * (st % 8)
            a(f"ds_read_b64_tr_b16 {vr(fa,2)}, v{vSR0} offset:{1024*st}")
            a(f"ds_read_b64_tr_b16 {vr(fa+2,2)}, v{vSR1} offset:{1024*st}")
            a(f"ds_read_b64_tr_b16 {vr(fb,2)}, v{vSR0} offset:{16384+1024*st}")
            a(f"ds_read_b64_tr_b16 {vr(fb+2,2)}, v{vSR1} offset:{16384+1024*st}")
        if st >= NPF:
            k = st - NPF
            a(f"v_mfma_f32_32x32x16_bf16 {vr(D,16)}, {vr(FA+4*(k%8),4)}, {vr(FB+4*(k%8),4)}, {vr(D,16) if k else 0}")
            for _ in range(3):
                if fill:
                    a(fill.pop(0))
    for t in fill:
        a(t)
    stamp(a, 4)
    flag_check(a, "A_fu", vFV, vFP, S_WS, sTAG, sCNT, sleep=3)
    if Ctx.stamps:
        a(f"s_mov_b32 s26, s{sCNT}")
    a("s_barrier")
    UR = 12
    fine(a, 2, 1)
    a(f"global_load_dwordx4 {vr(UR,4)}, v{vUG}, {sr(S_WS,2)} sc1")
    a(f"global_load_dwordx4 {vr(UR+4,4)}, v{vUG}, {sr(S_WS,2)} offset:1024 sc1")
    stamp(a, 5)
    fine(a, 2, 2)
    TA, TB_ = 48, 49
    a(f"v_cndmask_b32 v{D+9}, v{D+9}, v{D+8}, {sr(sM0,2)}")
    a(f"v_cndmask_b32 v{D+5}, v{D+5}, v{D+4}, {sr(sM1,2)}")
    a(f"v_cndmask_b32 v{TA}, v{D+12}, v{D+13}, {sr(sM2,2)}")
    a(f"v_cndmask_b32 v{TB_}, v{D+14}, v{D+15}, {sr(sM2,2)}")
    m1 = [0, 0, 1, 2, 2, 2, 3, 4, 4, 4, 5]
    m2 = [0, 0, 0, 1, 1, 1, 2, 2, 2, 2, 2]
    types = [
        (lambda o: D + 12 if o < 4 else (TA if o == 4 else D + 13), 1024, vK3, "all"),
        (lambda o: D + 14 if o < 4 else (TB_ if o == 4 else D + 15), 1280, vK3, "all"),
        (lambda o: D + m1[o], 256, vK, "hi"),
        (lambda o: D + 6 + m2[o], 512, vK, "hi"),
        (lambda o: D + 9 + m2[o], 768, vK, "hi"),
        (lambda o: D + o, 0, vK, "lo"),
    ]
    CB = 52
    a(f"ds_write_b32 v{vUZ}, v{ZR}")
    a(f"s_cmp_eq_u32 s{sMH}, 1")
    a.settle()
    a("s_cbranch_scc1 A_exp1")
    vm_save, lg_save = list(a.vm), list(a.lg)
    for mh in range(2):
        if mh == 1:
            a("s_branch A_exp_done")
            a.label("A_exp1")
            a.vm, a.lg = list(vm_save), list(lg_save)
        n = 0
        cur = "all"
        for ti, (src, B, va, ex) in enumerate(types):
            if ex != cur:
                cur = ex
                a(f"s_mov_b32 exec_lo, {0 if ex == 'hi' else -1}")
                a(f"s_mov_b32 exec_hi, {-1 if ex == 'hi' else 0}")
            for s in (2 * mh, 2 * mh + 1):
                c = CB + 4 * n
                n += 1
                for m in range(4):
                    a(f"v_cvt_pk_bf16_f32 v{c+m}, v{src(10-s-2*m)}, v{src(9-s-2*m)}")
                a(f"ds_write_b128 v{va}, {vr(c,4)} offset:{s*CS + 3584 - 2*B}")
        a("s_mov_b64 exec, 1")
        for s in (2 * mh, 2 * mh + 1):
            a(f"ds_write_b128 v{vKB}, {vr(ZR,4)} offset:{s*CS + 4144}")
            if s == 3:
                a(f"ds_write_b128 v{vKB}, {vr(ZR,4)} offset:{s*CS + 4128}")
                continue
            c = CB + 4 * n
            n += 1
            for m in range(4):
                lo, hi = 2 - s - 2 * m, 1 - s - 2 * m
                if lo < 0:
                    a(f"v_mov_b32 v{c+m}, 0")
                else:
                    a(f"v_cvt_pk_bf16_f32 v{c+m}, v{D+lo}, {('v%d' % (D+hi)) if hi >= 0 else '0'}")
            a(f"ds_write_b128 v{vKB}, {vr(c,4)} offset:{s*CS + 4128}")
        a("s_mov_b64 exec, -1")
        a.lg = a.lg + [dict(id=-1, regs=set(), smem=True)]
    a.label("A_exp_done")
    fine(a, 2, 3)
    a(f"ds_write_b128 v{vUW}, {vr(UR,4)} offset:512")
    a(f"ds_write_b128 v{vUW}, {vr(UR+4,4)} offset:1536")
    fine(a, 2, 4)
    a(f"s_lshl_b32 s{sT1}, s{sCG}, 7")
    a(f"s_add_u32 s{sT1}, s{sT1}, {FL_EA}")
    a(f"v_mov_b32 v{vT3}, s{sT1}")
    a(f"s_or_b32 s{sT0}, s{sJ}, s{sW}")
    a(f"s_cmp_lg_u32 s{sT0}, 0")
    a("s_cbranch_scc1 A_noep")
    a.raw("    s_mov_b64 exec, 1")
    a.raw(f"    global_store_dword v{vT3}, v{vTAG}, {sr(S_WS,2)} sc1")
    a.raw("    s_mov_b64 exec, -1")
    a.raw("A_noep:")
    a.wait_lg()
    fine(a, 2, 5)
    a("s_barrier")
    fine(a, 2, 6)
    stamp(a, 6)
    ACC = 32
    BUF = (64, 128)

    def reads(rl):
        b = BUF[rl & 1]
        out = []
        for k in range(8):
            out.append(f"ds_read_b128 {vr(b+32+4*k,4)}, v{vCB} offset:{512*k + 64*(3-rl)}")
            o = 512 * (7 - k) + 64 * (3 - rl)
            out.append(f"ds_read_b64 {vr(b+4*k,2)}, v{vCA} offset:{o}")
            out.append(f"ds_read_b64 {vr(b+4*k+2,2)}, v{vCA} offset:{o+8}")
        return out
    pairs = sorted([(mm, p) for mm in range(8) for p in range(8) if mm + p <= 7], key=lambda x: (max(x), x[0] + x[1]))
    first = reads(0)
    for r in first[:12]:
        a(r)
    first = first[12:]
    started = set()
    US = 192
    for rl in range(4):
        b = BUF[rl & 1]
        nxt = reads(rl + 1) if rl < 3 else [f"ds_read_b64 {vr(US+2*m,2)}, v{vUS} offset:{512 + 512*m}" for m in range(4)]
        if rl == 0:
            nxt = first + nxt
        for n, (mm, p) in enumerate(pairs):
            i = mm + p
            cin = vr(ACC + 4 * i, 4) if i in started else "0"
            started.add(i)
            a(f"v_mfma_f32_16x16x32_bf16 {vr(ACC+4*i,4)}, {vr(b+4*mm,4)}, {vr(b+32+4*p,4)}, {cin}")
            if nxt and (rl == 0 or n % 3 != 2):
                a(nxt.pop(0))
        assert not nxt
    stamp(a, 7)
    UX = 112
    for m in range(4):
        for e in range(4):
            src = US + 2 * m + (e >> 1)
            if e & 1:
                a(f"v_and_b32 v{UX+4*m+e}, 0xffff0000, v{src}")
            else:
                a(f"v_lshlrev_b32 v{UX+4*m+e}, 16, v{src}")
    KEEP = 96
    a(f"s_cmp_eq_u32 s{sMH}, 1")
    a.settle()
    a("s_cbranch_scc1 A_red1")
    lg_save = list(a.lg)
    for mh in range(2):
        if mh == 1:
            a("s_branch A_red_done")
            a.label("A_red1")
            a.lg = list(lg_save)
        send = ACC + 16 * (1 - mh)
        keep = ACC + 16 * mh
        for m in range(4):
            a(f"ds_write_b128 v{vRW}, {vr(send+4*m,4)} offset:{1024*m}")
        for k in range(16):
            a(f"v_fma_f32 v{KEEP+k}, v{UX+k}, s{sDS}, v{keep+k}")
        a.wait_lg()
    a.label("A_red_done")
    a("s_barrier")
    RR = 72
    for m in range(4):
        a(f"ds_read_b128 {vr(RR+4*m,4)}, v{vRR} offset:{1024*m}")
    a(f"v_add_u32 v{vUG}, {WS_YT}, v{vUG}")
    for m in range(4):
        a(f"v_pk_add_f32 {vr(KEEP+4*m,2)}, {vr(KEEP+4*m,2)}, {vr(RR+4*m,2)}")
        a(f"v_pk_add_f32 {vr(KEEP+4*m+2,2)}, {vr(KEEP+4*m+2,2)}, {vr(RR+4*m+2,2)}")
        a(f"v_cvt_pk_bf16_f32 v{US+2*m}, v{KEEP+4*m}, v{KEEP+4*m+1}")
        a(f"v_cvt_pk_bf16_f32 v{US+2*m+1}, v{KEEP+4*m+2}, v{KEEP+4*m+3}")
        a(f"ds_write_b64 v{vYW}, {vr(US+2*m,2)} offset:{512*m}")
    a.wait_lg()
    a(f"ds_read_b128 {vr(RR,4)}, v{vYR}")
    a(f"ds_read_b128 {vr(RR+4,4)}, v{vYR} offset:1024")
    a(f"global_store_dwordx4 v{vUG}, {vr(RR,4)}, {sr(S_WS,2)} sc1")
    a(f"global_store_dwordx4 v{vUG}, {vr(RR+4,4)}, {sr(S_WS,2)} offset:1024 sc1")
    stamp(a, 8)
    a.vm = []
    a.raw("    s_waitcnt vmcnt(0)")
    store_flag(a, vYC, vTAG, S_WS)
    a.wait_vm()
    a(f"global_load_dword v{vFV}, v{M1}, {sr(S_WS,2)} sc1")
    flag_check(a, "A_fy", vFV, M1, S_WS, sTAG, sCNT, sleep=1)
    stamp(a, 9)
    a(f"global_load_dwordx4 {vr(32,4)}, v{vY0}, {sr(S_WS,2)} sc1")
    a(f"global_load_dwordx4 {vr(36,4)}, v{vY1}, {sr(S_WS,2)} sc1")
    transpose(a, 32, 36, 40, vTW, vTR0, vTR1, 48, CB0)
    a(f"global_store_dwordx4 v{vO0}, {vr(48,4)}, {sr(S_OUT,2)}")
    a(f"global_store_dwordx4 v{vO1}, {vr(52,4)}, {sr(S_OUT,2)}")
    if Ctx.stamps or getattr(Ctx, "dfrom", None) is not None:
        a.wait_vm()
    stamp(a, 10)
    write_stamps(a, 11, 60, extra=(26, 26, sCNT))
    a("s_endpgm")
    flush_stubs(a)
```

```python
from gen_common import *

WKB = 0
MISC = 16384
XR = 32768
KVA, ZA, ZERO, OT = MISC, MISC + 2560, MISC + 2688, MISC + 4096
XF = 128
HI = 32768


def xslot(s):
    return XR + 16384 * s


def wk_base(c):
    return WKB + 4096 * c


def wv_base(c):
    return xslot(2) + 4096 * c if c < 4 else xslot(0) + 4096 * (c - 4)


def wq_base(c):
    return xslot(1) + 4096 * c if c < 4 else WKB + 4096 * (c - 4)


def wo_base(hp):
    return (xslot(2), xslot(0), xslot(1), WKB)[hp >> 2] + 4096 * (hp & 3)


sXC, sJ, sTB, sHP, sW, sT0, sT1, sT2, sTAG, sCNT, sE = 36, 37, 38, 39, 40, 41, 42, 43, 44, 45, 46
sW4K, sL2E, sT64, sCB, sW1K = 47, 48, 49, 50, 51
sMA, sMB = 52, 54
sKV = 56
sOL = 68
sOS, sKS = 76, 4
sOG = 6
sWA, sWB = 10, 12
sXA, sXB = 14, 16
sKA, sKB = 18, 20
sWO = 78
sROT, sR4 = 3, 33


def softmax_stream(P, E1, t):
    mx, mn, s1, s2 = t, t + 1, t + 2, t + 3
    E2 = P
    o = []
    o.append(f"v_max3_f32 v{mx}, v{P}, v{P+1}, v{P+2}")
    o.append(f"v_min3_f32 v{mn}, v{P}, v{P+1}, v{P+2}")
    for k in range(3, 15, 2):
        o.append(f"v_max3_f32 v{mx}, v{mx}, v{P+k}, v{P+k+1}")
        o.append(f"v_min3_f32 v{mn}, v{mn}, v{P+k}, v{P+k+1}")
    o.append(f"v_max_f32 v{mx}, v{mx}, v{P+15}")
    o.append(f"v_min_f32 v{mn}, v{mn}, v{P+15}")
    o.append(f"v_mul_f32 v{mx}, s{sL2E}, v{mx}")
    o.append(f"v_mul_f32 v{mn}, s{sL2E}, v{mn}")
    for k in range(16):
        o.append(f"v_fma_f32 v{E1+k}, v{P+k}, s{sL2E}, -v{mx}")
        o.append(f"v_fma_f32 v{E2+k}, -v{P+k}, s{sL2E}, v{mn}")
        o.append(f"v_exp_f32 v{E1+k}, v{E1+k}")
        o.append(f"v_exp_f32 v{E2+k}, v{E2+k}")
        if k == 2:
            o.append(f"v_add_f32 v{s1}, v{E1}, v{E1+1}")
            o.append(f"v_add_f32 v{s2}, v{E2}, v{E2+1}")
        elif k > 2:
            o.append(f"v_add_f32 v{s1}, v{s1}, v{E1+k-1}")
            o.append(f"v_add_f32 v{s2}, v{s2}, v{E2+k-1}")
    o.append(f"v_add_f32 v{s1}, v{s1}, v{E1+15}")
    o.append(f"v_add_f32 v{s2}, v{s2}, v{E2+15}")
    o.append(f"v_rcp_f32 v{s1}, v{s1}")
    o.append(f"v_rcp_f32 v{s2}, v{s2}")
    for k in range(0, 16, 2):
        for E, s in ((E1, s1), (E2, s2)):
            o.append(f"v_mul_f32 v{E+k}, v{s}, v{E+k}")
            o.append(f"v_mul_f32 v{E+k+1}, v{s}, v{E+k+1}")
        for E, s in ((E1, s1), (E2, s2)):
            o.append(f"v_cvt_pk_bf16_f32 v{E+k//2}, v{E+k}, v{E+k+1}")
    return o


def tr(dst, lo, hi, addr):
    return f"ds_read_b64_tr_b16 {vr(dst,2)}, v{hi if addr >= HI else lo} offset:{addr - HI if addr >= HI else addr}"


def gemm_groups(base, vlo, vhi, acc, WF, swap, blocks, first, nbuf=4, ahead=2):
    steps = [(c, s) for c in blocks for s in range(4)]

    def rd(n):
        c, s = steps[n]
        f = WF + 4 * (n % nbuf)
        return [tr(f, vlo, vhi, base(c) + 1024 * s), tr(f + 2, vlo, vhi, base(c) + 1024 * s + 256)]
    groups = [sum((rd(k) for k in range(ahead)), [])]
    for n, (c, s) in enumerate(steps):
        f, x = vr(WF + 4 * (n % nbuf), 4), vr(XF + 16 * c + 4 * s, 4)
        cin = "0" if (first and n == 0) else vr(acc, 16)
        g = [f"v_mfma_f32_32x32x16_bf16 {vr(acc,16)}, {x if swap else f}, {f if swap else x}, {cin}"]
        g += rd(n + ahead) if n + ahead < len(steps) else []
        groups.append(g)
    return groups


def merge(a, groups, *fills):
    fills = [(list(f), per) for f, per in fills]
    for i, g in enumerate(groups):
        for t in g:
            a(t)
        for f, per in fills:
            n = per(i) if callable(per) else per
            for _ in range(n):
                if f:
                    item = f.pop(0)
                    item() if callable(item) else a(item)
    return [f for f, _ in fills]


def gen_b(a):
    vL, vT, vT2, vT3, vTAG = 1, 2, 3, 4, 5
    vXG = 6
    vWK = 88
    vWXm = (10, 11, 21, 108)
    vWX = vWXm[0]
    vWO = 6
    vXA = 12
    vTK, vTKh, vTVh = 16, 17, 18
    vL16, vT12 = 19, 20
    TS = 22
    vI, vG, vRp, vCp, vCG, vPH = 26, 27, 28, 29, 30, 31
    vRW, vZR, vKW, vZWr, vKR, vZRd, vTO, vOLp, vOW, vOR, vOGp, vWO0, vWO1, vFC, vFV, vRR = range(96, 112)
    SEL, WP = 112, 120
    AK, AV, WF = 32, 48, 64
    M1 = 12
    a("s_setprio 1")
    a(f"s_and_b32 s{sXC}, s2, 7")
    a(f"s_lshr_b32 s{sJ}, s2, 3")
    a(f"v_lshrrev_b32 v{vT}, 6, v0")
    a(f"v_and_b32 v{vL}, 63, v0")
    a(f"v_readfirstlane_b32 s{sW}, v{vT}")
    a(f"s_lshr_b32 s{sT0}, s{sXC}, 1")
    a(f"s_lshl_b32 s{sT0}, s{sT0}, 2")
    a(f"s_lshr_b32 s{sT1}, s{sJ}, 3")
    a(f"s_add_u32 s{sTB}, s{sT0}, s{sT1}")
    a(f"v_lshrrev_b32 v{vT}, 3, v{vL}")
    a(f"v_lshrrev_b32 v{vT2}, 4, v{vL}")
    a(f"v_and_b32 v{vT3}, 7, v{vL}")
    a(f"v_xor_b32 v{vT2}, v{vT2}, v{vT3}")
    a(f"v_lshlrev_b32 v{vT2}, 4, v{vT2}")
    a(f"v_lshl_add_u32 v{vT}, v{vT}, 10, v{vT2}")
    a(f"s_lshl_b32 s{sT0}, s{sTB}, 17")
    a(f"s_lshl_b32 s{sT1}, s{sW}, 15")
    a(f"s_add_u32 s{sT2}, s{sT0}, s{sT1}")
    a(f"s_lshl_b32 s{sW4K}, s{sW}, 12")
    a(f"v_add_u32 v{vXG}, s{sT2}, v{vT}")
    a(f"v_xor_b32 v{vXG+1}, 64, v{vXG}")
    a(f"v_add_u32 v{vXG+1}, 0x2000, v{vXG+1}")
    a(f"v_add_u32 v{vXG+2}, 0x4000, v{vXG}")
    a(f"v_add_u32 v{vXG+3}, 0x4000, v{vXG+1}")
    a.wait_lg()

    def dma(m0, vaddr, sb, imm=0, slot=None):
        a(f"s_add_u32 m0, s{m0[0]}, {m0[1] - imm}")
        if slot:
            a(slot)
        return a(f"global_load_lds_dwordx4 v{vaddr}, {sr(sb,2)}" + (f" offset:{imm}" if imm else ""))

    def dma_x1(c, q, slot=None):
        return dma((sW4K, xslot(c % 3) + 1024 * q), vXG + q, sXB if c >= 4 else sXA, 128 * (c & 3), slot)

    def dma_wk(c, slot=None):
        return dma((sW1K, wk_base(c)), vWK + (c & 3), sKB if c >= 4 else sKA, 0, slot)
    tok = {}

    def wpiece(key, col, sb, ldsbase, m):
        def f(slot=None):
            tok[key] = dma((sW4K, ldsbase + 1024 * m), vWXm[m], sb, col, slot)
        return f

    def wopiece(key, grp, m):
        def f(slot=None):
            tok[key] = dma((sW4K, wo_base(4 * grp) + 1024 * m), vWO + m, (sXA, sXB, sKA, sKB)[grp], 0, slot)
        return f
    a(f"s_lshr_b32 s{sT1}, s{sJ}, 3")
    a(f"s_add_u32 s{sR4}, s{sT1}, s{sJ}")
    a(f"s_and_b32 s{sROT}, s{sR4}, {1 if getattr(Ctx, 'rot', True) else 0}")
    a(f"s_lshl_b32 s{sT0}, s{sROT}, 9")
    a.wait_lg()
    fine(a, 2, 1)
    a(f"s_add_u32 s{sXA}, s{S_X}, s{sT0}")
    a(f"s_addc_u32 s{sXA+1}, s{S_X+1}, 0")
    pre = [f"s_and_b32 s{sT1}, s{sXC}, 1", f"s_lshl_b32 s{sT1}, s{sT1}, 3", f"s_and_b32 s{sCB}, s{sJ}, 7",
           f"s_add_u32 s{sHP}, s{sT1}, s{sCB}"]
    for q in range(4):
        dma_x1(0, q, pre[q])
    a(f"s_lshl_b32 s{sW1K}, s{sW}, 10")
    a(f"v_lshlrev_b32 v{vL16}, 4, v{vL}")
    a(f"s_lshl_b32 s{sT1}, s{sHP}, 10")
    a(f"v_add_u32 v{vT}, s{sT1}, v{vL16}")
    tok[0] = dma((sW1K, wk_base(7)), vT, S_WPHI, 0, f"s_mov_b32 s{sT1}, {FL_EB}")
    a(f"s_load_dword s{sE}, {sr(S_WS,2)}, s{sT1}")
    pre = [f"v_lshrrev_b32 v{vT}, 2, v{vL}", f"v_mul_u32_u24 v{vT}, 3072, v{vT}", f"v_and_b32 v{vCp}, 3, v{vL}",
           f"v_lshl_add_u32 v{vWX}, v{vCp}, 4, v{vT}", f"s_lshl_b32 s{sT1}, s{sHP}, 6", f"v_add_u32 v{vWX}, s{sT1}, v{vWX}",
           f"s_mul_i32 s{sT1}, s{sW}, {16*3072}", f"v_add_u32 v{vWK}, s{sT1}, v{vWX}"]
    for q in range(4):
        tok[1] = dma_x1(1, q, pre[q])
    for q in range(4):
        tok[2] = dma_x1(2, q, pre[4 + q])
    code_prefetch(a, sW, 56, "B")
    a.out.append("@CUT")
    fine(a, 2, 2)
    a(f"s_xor_b32 s{sT0}, s{sT0}, 512")
    a(f"s_add_u32 s{sXB}, s{S_X}, s{sT0}")
    a(f"s_addc_u32 s{sXB+1}, s{S_X+1}, 0")
    a(f"s_mul_i32 s{sT0}, s{sROT}, {256*3072}")
    a(f"s_add_u32 s{sKA}, s{S_W}, s{sT0}")
    a(f"s_addc_u32 s{sKA+1}, s{S_W+1}, 0")
    a(f"s_sub_u32 s{sT0}, {256*3072}, s{sT0}")
    a(f"s_add_u32 s{sKB}, s{S_W}, s{sT0}")
    a(f"s_addc_u32 s{sKB+1}, s{S_W+1}, 0")
    for k in (3, 2, 1, 0):
        a(f"v_add_u32 v{vWK+k}, {64*3072*k + 1024}, v{vWK}")
    U = 48
    aw = []
    aw += [f"s_lshl_b32 s{sT1}, s{sHP}, 11", f"s_add_u32 s{sT0}, s{sT2}, s{sT1}", f"s_add_u32 s{sT0}, s{sT0}, {WS_O}",
           f"s_add_u32 s{sOS}, s{S_WS}, s{sT0}", f"s_addc_u32 s{sOS+1}, s{S_WS+1}, 0",
           f"s_lshl_b32 s{sT0}, s{sHP}, 4", f"s_add_u32 s{sT0}, s{sT0}, s{sTB}", f"s_mul_i32 s{sT0}, s{sT0}, {KVP_STRIDE}",
           f"s_add_u32 s{sT0}, s{sT0}, {WS_KVP}", f"s_add_u32 s{sKS}, s{S_WS}, s{sT0}", f"s_addc_u32 s{sKS+1}, s{S_WS+1}, 0",
           f"v_lshlrev_b32 v{vT12}, 4, v0"]
    aw += [f"v_and_b32 v{vI}, 31, v{vL}", f"v_lshrrev_b32 v{vG}, 5, v{vL}", f"v_bfe_u32 v{vRp}, v{vL}, 2, 2",
           f"v_bfe_u32 v{vCG}, v{vL}, 4, 1", f"v_lshrrev_b32 v{U}, 1, v{vCp}",
           f"v_lshlrev_b32 v{vPH}, 9, v{vG}", f"v_lshl_add_u32 v{vPH}, v{vRp}, 5, v{vPH}",
           f"v_lshl_add_u32 v{vPH}, v{vCG}, 4, v{vPH}", f"v_lshl_add_u32 v{vPH}, v{U}, 3, v{vPH}",
           f"v_add_u32 v{vPH}, s{sW1K}, v{vPH}",
           f"v_bfe_u32 v{U}, v{vL}, 1, 3", f"v_xor_b32 v{U}, v{U}, v{vG}", f"v_lshlrev_b32 v{U}, 4, v{U}",
           f"v_lshl_add_u32 v{U}, v{vI}, 7, v{U}", f"s_add_u32 s{sT0}, s{sW4K}, {XR}", f"v_add_u32 v{vXA}, s{sT0}, v{U}"]
    aw += [f"v_xor_b32 v{vXA+s}, {32*s}, v{vXA}" for s in range(1, 4)]
    aw += [f"v_bfe_u32 v{U}, v{vL}, 2, 1", f"v_cmp_eq_u32 {sr(sMA,2)}, v{U}, v{vG}", f"v_cmp_eq_u32 {sr(sMB,2)}, 1, v{vCG}",
           f"s_mov_b32 s{sCNT}, 0", f"s_mov_b32 s{sL2E}, 0x3fb8aa3b"]
    aw += [f"v_add_u32 v{vWXm[m]}, {16*3072*m}, v{vWX}" for m in range(1, 4)]
    aw += [f"s_mul_i32 s{sT0}, s{sW}, {64*3072}", f"s_add_u32 s{sWA}, s{sKA}, s{sT0}", f"s_addc_u32 s{sWA+1}, s{sKA+1}, 0",
           f"s_add_u32 s{sWB}, s{sKB}, s{sT0}", f"s_addc_u32 s{sWB+1}, s{sKB+1}, 0"]
    aw += [f"v_lshl_add_u32 v{U}, v{vG}, 3, v{vRp}", f"v_lshlrev_b32 v{U}, 6, v{U}",
           f"v_lshlrev_b32 v{U+1}, 3, v{vCp}", f"v_lshl_add_u32 v{U+1}, v{vCG}, 5, v{U+1}",
           f"v_add_u32 v{U+1}, v{U}, v{U+1}", f"v_add_u32 v{vTVh}, {HI}, v{U+1}",
           f"v_and_b32 v{U+1}, 1, v{vCp}", f"v_lshl_add_u32 v{U}, v{U+1}, 5, v{U}",
           f"v_lshl_add_u32 v{U}, v{vCG}, 4, v{U}", f"v_lshrrev_b32 v{U+1}, 1, v{vCp}",
           f"v_lshl_add_u32 v{vTK}, v{U+1}, 3, v{U}", f"v_add_u32 v{vTKh}, {HI}, v{vTK}"]
    aw += [f"v_bfe_u32 v{U}, v{vL}, 2, 1", f"v_bfe_u32 v{U+1}, v{vL}, 3, 1",
           f"v_lshl_add_u32 v{U+2}, v{U+1}, 2, v{vCp}", f"v_and_b32 v{U+3}, 1, v{U+2}",
           f"v_lshlrev_b32 v{U+3}, 4, v{U+3}", f"v_mov_b32 v{U+4}, 0x3f80", f"v_lshlrev_b32 v{U+3}, v{U+3}, v{U+4}",
           f"v_cmp_eq_u32 vcc, v{vCG}, v{vG}", f"v_cndmask_b32 v{U+3}, 0, v{U+3}, vcc",
           f"v_lshrrev_b32 v{U+4}, 1, v{U+2}", f"v_lshl_add_u32 v{U+4}, v{U}, 2, v{U+4}"]
    for k in range(8):
        aw += [f"v_cmp_eq_u32 vcc, {k}, v{U+4}", f"v_cndmask_b32 v{SEL+k}, 0, v{U+3}, vcc"]
    aw += [f"v_lshl_add_u32 v{U+2}, v{U}, 3, v{U+2}", f"v_lshl_add_u32 v{U+2}, v{vG}, 4, v{U+2}",
           f"v_lshl_add_u32 v{U+2}, v{vCG}, 5, v{U+2}", f"v_lshlrev_b32 v{U+2}, 1, v{U+2}",
           f"v_add_u32 v{vZWr}, {ZA}, v{U+2}"]
    aw += [f"s_add_u32 s{sT0}, s{sW4K}, {MISC}", f"v_add_u32 v{vRW}, s{sT0}, v{vL16}",
           f"s_add_u32 s{sT0}, s{sW1K}, {MISC}", f"v_add_u32 v{vRR}, s{sT0}, v{vL16}",
           f"v_lshlrev_b32 v{U}, 2, v{vG}", f"v_lshl_add_u32 v{U}, v{vI}, 3, v{U}", f"v_add_u32 v{vZR}, {MISC}, v{U}"]
    aw += [f"v_mul_u32_u24 v{U}, 80, v{vI}", f"v_lshl_add_u32 v{U}, v{vG}, 4, v{U}",
           f"s_lshr_b32 s{sT0}, s{sW}, 1", f"s_lshl_b32 s{sT0}, s{sT0}, 5", f"s_and_b32 s{sT1}, s{sW}, 1",
           f"s_lshl_b32 s{sT1}, s{sT1}, 3", f"s_add_u32 s{sT0}, s{sT0}, s{sT1}", f"s_add_u32 s{sT0}, s{sT0}, {KVA}",
           f"v_add_u32 v{vKW}, s{sT0}, v{U}",
           f"v_bfe_u32 v{U}, v{vL}, 3, 2", f"v_lshl_add_u32 v{U}, v{U}, 2, v{vCp}", f"v_lshl_add_u32 v{U}, v{vG}, 4, v{U}",
           f"v_mul_u32_u24 v{U}, 80, v{U}", f"v_add_u32 v{U}, {KVA}, v{U}", f"v_mov_b32 v{U+1}, {ZERO}",
           f"v_cndmask_b32 v{vKR}, v{U+1}, v{U}, {sr(sMA,2)}",
           f"v_lshlrev_b32 v{U}, 6, v{vG}", f"v_add_u32 v{U}, {ZA}, v{U}",
           f"v_cndmask_b32 v{vZRd}, v{U+1}, v{U}, {sr(sMA,2)}"]
    aw += [f"s_mul_i32 s{sT0}, s{sHP}, {16*KVP_STRIDE}", f"s_add_u32 s{sT0}, s{sT0}, {WS_KVP + KVP_STRIDE}"]
    for k in range(4):
        aw += [f"s_add_u32 s{sT1}, s{sTB}, {k}", f"s_and_b32 s{sT1}, s{sT1}, 3", f"s_lshl_b32 s{sT1}, s{sT1}, 14",
               f"s_add_u32 s{sT1}, s{sT1}, s{sT0}",
               f"s_add_u32 s{sKV+2*k}, s{S_WS}, s{sT1}", f"s_addc_u32 s{sKV+2*k+1}, s{S_WS+1}, 0"]
    aw += [f"s_lshl_b32 s{sT64}, s{sXC}, 2", f"s_lshr_b32 s{sT0}, s{sJ}, 3", f"s_add_u32 s{sT64}, s{sT64}, s{sT0}"]
    aw += [f"v_lshrrev_b32 v{U}, 3, v{vL}", f"v_and_b32 v{U+1}, 7, v{vL}",
           f"v_lshlrev_b32 v{U+2}, 1, v{vCG}", f"v_xor_b32 v{U+2}, v{U+2}, v{U+1}", f"v_lshlrev_b32 v{U+2}, 4, v{U+2}",
           f"v_lshl_add_u32 v{vWO0}, v{U}, 10, v{U+2}",
           f"s_lshl_b32 s{sT0}, s{sCB}, 7", f"s_lshl_b32 s{sT1}, s{sW}, 15", f"s_add_u32 s{sT2}, s{sT0}, s{sT1}",
           f"s_add_u32 s{sWO}, s{S_WO}, s{sT2}", f"s_addc_u32 s{sWO+1}, s{S_WO+1}, 0",
           f"v_lshlrev_b32 v{U+2}, 4, v{U+1}", f"v_lshl_add_u32 v{vOGp}, v{U}, 11, v{U+2}",
           f"s_lshl_b32 s{sT0}, s{sT64}, 17", f"s_add_u32 s{sT0}, s{sT0}, s{sT2}", f"s_add_u32 s{sT0}, s{sT0}, 1024",
           f"s_add_u32 s{sOG}, s{S_OUT}, s{sT0}", f"s_addc_u32 s{sOG+1}, s{S_OUT+1}, 0",
           f"s_add_u32 s{sOG+2}, s{sOG}, 0x4000", f"s_addc_u32 s{sOG+3}, s{sOG+1}, 0",
           f"s_mul_i32 s{sT0}, s{sW}, 2304", f"s_add_u32 s{sT0}, s{sT0}, {OT}",
           f"v_mul_u32_u24 v{U}, 144, v{U}", f"v_add3_u32 v{vOR}, v{U}, v{U+2}, s{sT0}",
           f"v_and_b32 v{U+1}, 15, v{vL}", f"v_lshrrev_b32 v{U+2}, 4, v{vL}",
           f"v_mul_u32_u24 v{U}, 144, v{U+1}", f"v_lshl_add_u32 v{U}, v{U+2}, 3, v{U}", f"v_add_u32 v{vOW}, s{sT0}, v{U}",
           f"v_lshl_add_u32 v{U}, v{U+2}, 3, v{vRp}", f"v_lshlrev_b32 v{U}, 7, v{U}", f"v_lshl_add_u32 v{U}, v{vCp}, 3, v{U}",
           f"v_lshrrev_b32 v{U+2}, 1, v{vRp}", f"v_lshl_add_u32 v{U+2}, v{vCG}, 1, v{U+2}",
           f"v_lshl_add_u32 v{vTO}, v{U+2}, 5, v{U}",
           f"v_lshlrev_b32 v{U}, 4, v{U+1}", f"v_lshl_add_u32 v{U}, v{vCG}, 10, v{U}", f"v_lshl_add_u32 v{vOLp}, v{vG}, 9, v{U}",
           f"s_lshl_b32 s{sT0}, s{sT64}, 16", f"s_lshr_b32 s{sT1}, s{sW}, 1", f"s_lshl_b32 s{sT1}, s{sT1}, 15",
           f"s_add_u32 s{sT0}, s{sT0}, s{sT1}", f"s_and_b32 s{sT1}, s{sW}, 1", f"s_lshl_b32 s{sT1}, s{sT1}, 8",
           f"s_add_u32 s{sT0}, s{sT0}, s{sT1}", f"s_add_u32 s{sT0}, s{sT0}, {WS_O + 4096}",
           ]
    for k in range(4):
        aw += [f"s_add_u32 s{sT1}, s{sR4}, {k}", f"s_and_b32 s{sT1}, s{sT1}, 3", f"s_lshl_b32 s{sT1}, s{sT1}, 13",
               f"s_add_u32 s{sT1}, s{sT1}, s{sT0}",
               f"s_add_u32 s{sOL+2*k}, s{S_WS}, s{sT1}", f"s_addc_u32 s{sOL+2*k+1}, s{S_WS+1}, 0"]
    aw += [f"s_lshr_b32 s{sT0}, s{sT64}, 1", f"s_lshl_b32 s{sT0}, s{sT0}, 11", f"s_lshl_b32 s{sT1}, s{sW}, 9",
           f"s_add_u32 s{sT0}, s{sT0}, s{sT1}", f"s_add_u32 s{sT0}, s{sT0}, {FL_FC}",
           f"v_lshl_add_u32 v{vFC}, v{vCp}, 7, s{sT0}",
           f"s_lshl_b32 s{sT0}, s{sTB}, 4", f"s_add_u32 s{sT0}, s{sT0}, s{sHP}", f"s_lshl_b32 s{sT0}, s{sT0}, 7",
           f"s_add_u32 s{sT0}, s{sT0}, {FL_FC}", f"v_mov_b32 v{vFV}, s{sT0}"]

    def take(n):
        k = 0
        while aw and (k < n or aw[0].startswith("s_addc") or aw[0].endswith("vcc")):
            a(aw.pop(0))
            k += 1
    per = (len(aw) + 6) // 7
    for c in range(7):
        dma_wk(c, "s_nop 0")
        fine(a, 2, 3 + c)
        take(per)
    assert not aw
    fine(a, 2, 10)
    stamp(a, 1)

    WFK = 48
    kq = [(c, s) for c in range(8) for s in range(4)]
    nrd = [0]

    def krd():
        c, s = kq[nrd[0]]
        f = WFK + 4 * (nrd[0] % 8)
        nrd[0] += 1
        a(tr(f, vTK, vTKh, wk_base(c) + 1024 * s))
        a(tr(f + 2, vTK, vTKh, wk_base(c) + 1024 * s + 256))
    nmf = [0]

    def kmf():
        n = nmf[0]
        c, s = kq[n]
        nmf[0] += 1
        return f"v_mfma_f32_32x32x16_bf16 {vr(AK,16)}, {vr(WFK+4*(n%8),4)}, {vr(XF+16*c+4*s,4)}, {vr(AK,16) if n else 0}"
    wv = [wpiece("v0", 2048, sWA, xslot(2), m) for m in range(4)] + [wpiece("v1", 2048, sWB, xslot(0), m) for m in range(4)]
    for c in range(8):
        if c == 0:
            fine(a, 1, 1)
        a.wait_vm(tok[c])
        fine(a, 1, 2 + c)
        t = None
        for s in range(4):
            t = a(f"ds_read_b128 {vr(XF+16*c+4*s,4)}, v{vXA+s} offset:{16384*(c%3)}")
        if c == 0:
            for s in range(2):
                a(f"ds_read_b64_tr_b16 {vr(WP+4*s,2)}, v{vPH} offset:{wk_base(7)+256*s}")
                a(f"ds_read_b64_tr_b16 {vr(WP+4*s+2,2)}, v{vPH} offset:{wk_base(7)+256*s+128}")
            a.wait_lg()
            dma_wk(7, f"s_mul_i32 s{sTAG}, s{sE}, {TAG_MUL}")
            a(f"s_add_u32 s{sTAG}, s{sTAG}, {TAG_ADD}")
            a(f"v_mov_b32 v{vTAG}, s{sTAG}")
        if c == 3:
            a("s_barrier")
            for _ in range(7):
                krd()
        a.wait_lg(t)
        if c < 5:
            iss = [(lambda slot, q=q: tok.__setitem__(c + 3, dma_x1(c + 3, q, slot))) for q in range(4)]
        elif c == 5:
            iss = [wv.pop(0), None, wv.pop(0), None]
        else:
            iss = [wv.pop(0), None, None, None]
        nm = {3: 2, 4: 2, 5: 2, 6: 1, 7: 1}.get(c, 0)
        for q in range(4):
            if nm == 0:
                if c == 0:
                    iss[q](f"v_cndmask_b32 v{WP+2*q}, 0, v{WP+2*q}, {sr(sMA,2)}")
                    a(f"v_cndmask_b32 v{WP+2*q+1}, 0, v{WP+2*q+1}, {sr(sMA,2)}")
                else:
                    iss[q]("s_nop 0")
                continue
            if iss[q]:
                iss[q](kmf())
            else:
                a(kmf())
            if nrd[0] < 32:
                krd()
            if nm == 2:
                a(kmf())
                if nrd[0] < 32:
                    krd()
    stamp(a, 2)
    fine(a, 1, 10)
    KB, P, E1 = 80, 32, 80
    wv.pop(0)()
    for k in range(8):
        a(f"v_cvt_pk_bf16_f32 v{KB+k}, v{AK+2*k}, v{AK+2*k+1}")
    a(f"v_mfma_f32_32x32x16_bf16 {vr(P,16)}, {vr(WP,4)}, {vr(KB,4)}, 0")
    a(f"v_mfma_f32_32x32x16_bf16 {vr(P,16)}, {vr(WP+4,4)}, {vr(KB+4,4)}, {vr(P,16)}")
    wv.pop(0)()
    fine(a, 3, 1)
    a.wait_vm(tok["v0"])
    a("s_barrier")
    fine(a, 3, 2)
    g1 = gemm_groups(wv_base, None, vTVh, AV, WF, True, range(4), True, ahead=3)
    sm = softmax_stream(P, E1, TS)
    wq = [wpiece("q0", 0, sWA, xslot(1), m) for m in range(4)] + [wpiece("q1", 0, sWB, WKB, m) for m in range(4)]
    def clear(off):
        def f():
            tok["clr"] = a(f"global_store_dwordx4 v{vL16}, {vr(M1,4)}, {sr(sOS,2)} offset:{off} sc1")
        return f
    for k in range(4):
        a(f"v_mov_b32 v{M1+k}, -1")
    sm, wq = merge(a, g1, (sm, 5), (wv + wq, lambda i: 1 if i % 4 == 1 else 0))
    fine(a, 3, 3)
    a.wait_vm(tok["v1"])
    a("s_barrier")
    fine(a, 3, 4)
    g2 = gemm_groups(wv_base, None, vTVh, AV, WF, True, range(4, 8), False, ahead=3)
    sm, wq = merge(a, g2, (sm, 5), (wq, lambda i: 1 if i % 4 == 1 else 0))
    for t in sm:
        a(t)
    stamp(a, 3)
    fine(a, 3, 5)
    PP, PN = E1, P
    DP, DN, VB, APK, ANK = 64, 32, 88, 48, 56
    PN2 = 88
    for k in range(0, 8, 2):
        a(f"v_mov_b64 {vr(PN2+k,2)}, {vr(PN+k,2)}")
    a(f"v_mfma_f32_32x32x16_bf16 {vr(DP,16)}, {vr(PP,4)}, {vr(SEL,4)}, 0")
    a(f"v_mfma_f32_32x32x16_bf16 {vr(DP,16)}, {vr(PP+4,4)}, {vr(SEL+4,4)}, {vr(DP,16)}")
    a(f"v_mfma_f32_32x32x16_bf16 {vr(DN,16)}, {vr(PN2,4)}, {vr(SEL,4)}, 0")
    a(f"v_mfma_f32_32x32x16_bf16 {vr(DN,16)}, {vr(PN2+4,4)}, {vr(SEL+4,4)}, {vr(DN,16)}")
    VB = 80
    wq.pop(0)()
    for k in range(8):
        a(f"v_cvt_pk_bf16_f32 v{VB+k}, v{AV+2*k}, v{AV+2*k+1}")
    for k in range(8):
        a(f"v_cvt_pk_bf16_f32 v{APK+k}, v{DP+2*k}, v{DP+2*k+1}")
    ZS = 22
    for k in range(0, 8, 2):
        a(f"v_pk_add_f32 {vr(DP+k,2)}, {vr(DP+k,2)}, {vr(DP+8+k,2)}")
    for k in range(8):
        a(f"v_cvt_pk_bf16_f32 v{ANK+k}, v{DN+2*k}, v{DN+2*k+1}")
    a(f"v_pk_add_f32 {vr(88,2)}, {vr(DP,2)}, {vr(DP+2,2)}")
    a(f"v_pk_add_f32 {vr(90,2)}, {vr(DP+4,2)}, {vr(DP+6,2)}")
    KP, KN = DP, DN
    a(f"v_mfma_f32_32x32x16_bf16 {vr(KP,16)}, {vr(APK,4)}, {vr(VB,4)}, 0")
    a(f"v_mfma_f32_32x32x16_bf16 {vr(KP,16)}, {vr(APK+4,4)}, {vr(VB+4,4)}, {vr(KP,16)}")
    for k in range(0, 8, 2):
        a(f"v_pk_add_f32 {vr(DN+k,2)}, {vr(DN+k,2)}, {vr(DN+8+k,2)}")
    a(f"v_pk_add_f32 {vr(92,2)}, {vr(DN,2)}, {vr(DN+2,2)}")
    a(f"v_pk_add_f32 {vr(94,2)}, {vr(DN+4,2)}, {vr(DN+6,2)}")
    a(f"v_mfma_f32_32x32x16_bf16 {vr(KN,16)}, {vr(ANK,4)}, {vr(VB,4)}, 0")
    a(f"v_mfma_f32_32x32x16_bf16 {vr(KN,16)}, {vr(ANK+4,4)}, {vr(VB+4,4)}, {vr(KN,16)}")
    wq.pop(0)()
    assert not wq
    a(f"v_pk_add_f32 {vr(88,2)}, {vr(88,2)}, {vr(90,2)}")
    a(f"v_pk_add_f32 {vr(92,2)}, {vr(92,2)}, {vr(94,2)}")
    a(f"v_add_f32 v{ZS}, v88, v89")
    a(f"v_add_f32 v{ZS+1}, v92, v93")
    a(f"v_lshrrev_b32 v{vT}, 1, v{vL16}")
    a(f"s_add_u32 s{sT0}, s{sW4K}, s{sW1K}")
    a(f"s_add_u32 s{sT0}, s{sT0}, {MISC}")
    a(f"v_add_u32 v{vT}, s{sT0}, v{vT}")
    a(f"ds_write_b64 v{vT}, {vr(ZS,2)}")
    SV = 48
    fine(a, 3, 6)
    for k in range(8):
        a(f"v_cndmask_b32 v{SV+k}, v{KP+k}, v{KP+8+k}, {sr(sMB,2)}")
    RQ, RZ, PB = 64, 80, 88
    a(f"s_cmp_lt_u32 s{sW}, 2")
    a("s_cbranch_scc1 B_red_lo")
    a(f"s_cmp_eq_u32 s{sW}, 2")
    a("s_cbranch_scc1 B_red_2")
    a("s_branch B_red_3")
    a.raw("B_red_lo:")
    a(f"s_cmp_eq_u32 s{sW}, 1")
    a("s_cbranch_scc1 B_red_1")
    state = (list(a.vm), list(a.lg), list(a.hist), a.pos)
    for w in range(4):
        a.vm, a.lg, a.hist, a.pos = list(state[0]), list(state[1]), list(state[2]), state[3]
        a.raw(f"B_red_{w}:")
        for q in range(2):
            if q != w:
                a(f"ds_write_b128 v{vRW}, {vr(SV+4*q,4)} offset:{1024*q}")
        for k in range(8):
            a(f"v_cndmask_b32 v{SV+8+k}, v{KN+k}, v{KN+8+k}, {sr(sMB,2)}")
        for q in range(2, 4):
            if q != w:
                a(f"ds_write_b128 v{vRW}, {vr(SV+4*q,4)} offset:{1024*q}")
        fine(a, 3, 7)
        a.wait_vm(tok["q0"])
        fine(a, 3, 8)
        a.wait_lg()
        a("s_barrier")
        fine(a, 3, 9)
        fine(a, 4, 1)
        n = 0
        for w2 in range(4):
            if w2 != w:
                a(f"ds_read_b128 {vr(RQ+4*n,4)}, v{vRR} offset:{4096*w2}")
                n += 1
        for w2 in range(4):
            for h in range(2):
                a(f"ds_read_b32 v{RZ+2*w2+h}, v{vZR} offset:{5120*w2+256*h}")
        OQ = SV + 4 * w
        for n in range(3):
            a(f"v_pk_add_f32 {vr(OQ,2)}, {vr(OQ,2)}, {vr(RQ+4*n,2)}")
            a(f"v_pk_add_f32 {vr(OQ+2,2)}, {vr(OQ+2,2)}, {vr(RQ+4*n+2,2)}")
        a(f"v_cvt_pk_bf16_f32 v{PB}, v{OQ}, v{OQ+1}")
        a(f"v_cvt_pk_bf16_f32 v{PB+1}, v{OQ+2}, v{OQ+3}")
        if w < 3:
            a("s_branch B_red_done")
    a.raw("B_red_done:")
    fine(a, 4, 2)
    for k in (0, 2):
        a(f"v_pk_add_f32 {vr(RZ+2*k,2)}, {vr(RZ+2*k,2)}, {vr(RZ+2*k+2,2)}")
    a(f"v_pk_add_f32 {vr(RZ,2)}, {vr(RZ,2)}, {vr(RZ+4,2)}")
    a(f"v_add_f32 v{PB+2}, v{RZ}, v{RZ+1}")
    a(f"v_mov_b32 v{PB+3}, v{vTAG}")
    fine(a, 4, 3)
    a(f"global_store_dwordx4 v{vT12}, {vr(PB,4)}, {sr(sKS,2)} sc1")
    fine(a, 3, 10)
    fine(a, 4, 4)
    fine(a, 3, 10)
    stamp(a, 4)

    wa = [f"v_mov_b32 v{vWO}, v{vWO0}", f"v_xor_b32 v{vWO+1}, 64, v{vWO0}", f"v_add_u32 v{vWO+1}, 0x2000, v{vWO+1}",
          f"v_add_u32 v{vWO+2}, 0x4000, v{vWO}", f"v_add_u32 v{vWO+3}, 0x4000, v{vWO+1}"]
    for k, sb in enumerate((sXA, sXB, sKA, sKB)):
        wa += [f"s_add_u32 s{sT0}, s{sR4}, {k}", f"s_and_b32 s{sT0}, s{sT0}, 3", f"s_lshl_b32 s{sT0}, s{sT0}, 17",
               f"s_add_u32 s{sb}, s{sWO}, s{sT0}", f"s_addc_u32 s{sb+1}, s{sWO+1}, 0"]
    AQ = 32
    wo0 = [clear(0), clear(1024)] + [wopiece("o0", grp, m) for grp in (0, 1) for m in range(4)]
    g = gemm_groups(wq_base, vTK, vTKh, AQ, 48, False, range(4), True, nbuf=8, ahead=6)
    _, wo0 = merge(a, g, (wa, 5), (wo0, lambda i: 1 if i % 3 == 2 else 0))
    fine(a, 4, 5)
    a.wait_vm(tok["q1"])
    a("s_barrier")
    fine(a, 4, 6)
    g = gemm_groups(wq_base, vTK, vTKh, AQ, 48, False, range(4, 8), False, nbuf=8, ahead=6)
    merge(a, g, (wo0, lambda i: 1 if i % 3 == 2 else 0))
    KL = 128
    vT16b = 16
    a(f"v_add_u32 v{vT16b}, {2*KVP_STRIDE}, v{vT12}")
    kloads = [f"global_load_dwordx4 {vr(KL+4*p,4)}, v{vT16b if p & 2 else vT12}, {sr(sKV+2*(p//4),2)} offset:{((p&1)-1)*KVP_STRIDE} sc1" for p in range(16)]
    kl = list(kloads)
    fine(a, 4, 7)
    a.wait_vm(tok["clr"])
    a("s_barrier")
    store_flag(a, vFV, vTAG, S_WS)
    a(kl.pop(0))
    for k in range(8):
        a(f"v_cvt_pk_bf16_f32 v{64+k}, v{AQ+2*k}, v{AQ+2*k+1}")
    a(f"v_mfma_f32_32x32x16_bf16 {vr(P,16)}, {vr(WP,4)}, {vr(64,4)}, 0")
    a(f"v_mfma_f32_32x32x16_bf16 {vr(P,16)}, {vr(WP+4,4)}, {vr(68,4)}, {vr(P,16)}")
    a(kl.pop(0))
    a(kl.pop(0))
    stamp(a, 5)
    fine(a, 4, 8)
    a(f"v_and_b32 v{vT}, 15, v{vL}")
    a(f"v_lshlrev_b32 v{vT}, 2, v{vT}")
    a(f"v_mov_b32 v{vT3}, 0")
    a(f"ds_write_b32 v{vT}, v{vT3} offset:{ZERO}")
    sm = softmax_stream(P, E1, TS)
    chunks = [sm[i:i + 9] for i in range(0, len(sm), 9)]
    merge(a, chunks, (kl, 1))
    PQ = (E1, E1 + 4, P, P + 4)
    stamp(a, 6)
    fine(a, 4, 9)
    S4, UT = 48, 56

    wo1 = [wopiece("o1", grp, m) for grp in (2, 3) for m in range(4)]

    def ksum(emit):
        for p in range(16):
            r = KL + 4 * p
            if emit is a and p >= 8:
                wo1.pop(0)()
            d = S4 if p == 0 else UT + 4 * (p & 1)
            emit(f"v_lshlrev_b32 v{d}, 16, v{r}")
            emit(f"v_and_b32 v{d+1}, 0xffff0000, v{r}")
            emit(f"v_lshlrev_b32 v{d+2}, 16, v{r+1}")
            emit(f"v_and_b32 v{d+3}, 0xffff0000, v{r+1}")
            if p == 0:
                emit(f"v_mov_b32 v{S4+4}, v{r+2}")
                emit(f"v_xor_b32 v{S4+5}, v{vTAG}, v{r+3}")
            else:
                emit(f"v_bitop3_b32 v{S4+5}, v{vTAG}, v{r+3}, v{S4+5} bitop3:0xbe")
                emit(f"v_pk_add_f32 {vr(S4,2)}, {vr(S4,2)}, {vr(d,2)}")
                emit(f"v_pk_add_f32 {vr(S4+2,2)}, {vr(S4+2,2)}, {vr(d+2,2)}")
                emit(f"v_add_f32 v{S4+4}, v{S4+4}, v{r+2}")
        emit(f"v_cmp_ne_u32 vcc, 0, v{S4+5}")
    ksum(a)
    a("s_cbranch_vccnz B_kv_r")
    a.raw("B_kv_k:")
    st = ["B_kv_r:"] + ["    " + t for t in kloads]
    st += [f"    s_add_u32 s{sCNT}, s{sCNT}, 1", f"    s_cmp_gt_u32 s{sCNT}, {SPIN_MAX}", "    s_waitcnt vmcnt(0)",
           "    s_cbranch_scc1 B_kv_k"]
    ksum(lambda t: st.append("    " + t))
    st += ["    s_nop 1", "    s_cbranch_vccnz B_kv_r", "    s_branch B_kv_k"]
    Retry.stubs.append("\n".join(st))
    if Ctx.stamps:
        a(f"s_mov_b32 s27, s{sCNT}")
    a(f"v_cvt_pk_bf16_f32 v{UT}, v{S4}, v{S4+1}")
    a(f"v_cvt_pk_bf16_f32 v{UT+1}, v{S4+2}, v{S4+3}")
    a(f"v_cvt_pk_bf16_f32 v{UT+2}, v{S4+4}, v{S4+4}")
    a(f"ds_write_b64 v{vKW}, {vr(UT,2)}")
    a(f"ds_write_b16 v{vZWr}, v{UT+2}")
    a(f"global_load_dword v{vFV}, v{vFC}, {sr(S_WS,2)} sc1")
    a.wait_vm(tok["o0"])
    a.wait_lg()
    a("s_barrier")
    stamp(a, 7)
    fine(a, 4, 10)
    FK, FZ, NUM, DEN = 128, 144, 64, 48
    for s in range(4):
        a(f"ds_read_b128 {vr(FZ+4*s,4)}, v{vZRd} offset:{16*s}")
        a(f"ds_read_b128 {vr(FK+4*s,4)}, v{vKR} offset:{16*s}")
    for s in range(4):
        a(f"v_mfma_f32_32x32x16_bf16 {vr(DEN,16)}, {vr(FZ+4*s,4)}, {vr(PQ[s],4)}, {vr(DEN,16) if s else 0}")
    for s in range(4):
        a(f"v_mfma_f32_32x32x16_bf16 {vr(NUM,16)}, {vr(FK+4*s,4)}, {vr(PQ[s],4)}, {vr(NUM,16) if s else 0}")
    vTOl, vTOh = 6, 10
    for ct in range(4):
        a(f"v_xor_b32 v{vTOl+ct}, {32*ct}, v{vTO}")
        a(f"v_add_u32 v{vTOh+ct}, {HI}, v{vTOl+ct}")
    a(f"v_add_f32 v{DEN}, 0x358637bd, v{DEN}")
    a(f"v_rcp_f32 v{DEN}, v{DEN}")
    OB = 88
    for k in range(8):
        a(f"v_pk_mul_f32 {vr(NUM+2*k,2)}, {vr(NUM+2*k,2)}, {vr(DEN,2)} op_sel_hi:[1,0]")
        a(f"v_cvt_pk_bf16_f32 v{OB+k}, v{NUM+2*k}, v{NUM+2*k+1}")
        if k == 3:
            a(f"global_store_dwordx4 v{vL16}, {vr(OB,4)}, {sr(sOS,2)} sc1")
    a(f"global_store_dwordx4 v{vL16}, {vr(OB+4,4)}, {sr(sOS,2)} offset:1024 sc1")
    stamp(a, 8)
    AO = 32
    WB = [48, 64, 128, 144, 160, 176]

    def wrd(h):
        o = []
        for ct in range(4):
            f = WB[h % len(WB)] + 4 * ct
            o.append(tr(f, vTOl + ct, vTOh + ct, wo_base(h)))
            o.append(tr(f + 2, vTOl + ct, vTOh + ct, wo_base(h) + 512))
        return o
    NPRE = len(WB) - 1
    for h in range(NPRE):
        for t in wrd(h):
            a(t)
    flag_check(a, "B_fc", vFV, vFC, S_WS, sTAG, sCNT, sleep=1)
    if Ctx.stamps:
        a(f"s_mov_b32 s26, s{sCNT}")
    a.wait_vm()
    a("s_barrier")
    OF = 192
    oloads = [f"global_load_dwordx4 {vr(OF+4*h,4)}, v{vOLp}, {sr(sOL+2*(h//4),2)} offset:{(h%4-2)*2048} sc1" for h in range(16)]
    LEAD = getattr(Ctx, "lead", 8)
    for t in oloads[:LEAD]:
        a(t)
    stamp(a, 9)
    for h in range(16):
        checked(a, "B_o", h, oloads[:min(16, h + LEAD)], OF + 4 * h, 4, vT, sCNT)
        nxt = wrd(h + NPRE) if h + NPRE < 16 else []
        for ct in range(4):
            a(f"v_mfma_f32_16x16x32_bf16 {vr(AO+4*ct,4)}, {vr(WB[h%len(WB)]+4*ct,4)}, {vr(OF+4*h,4)}, {vr(AO+4*ct,4) if h else 0}")
            for t in nxt[2 * ct:2 * ct + 2]:
                a(t)
            if ct == 0 and h + LEAD < 16:
                a(oloads[h + LEAD])
    a(f"v_mov_b32 v{vT}, {FL_EB}")
    a(f"s_or_b32 s{sT0}, s2, s{sW}")
    a(f"s_cmp_lg_u32 s{sT0}, 0")
    a("s_cbranch_scc1 B_noep")
    a.raw("    s_mov_b64 exec, 1")
    a.raw(f"    global_store_dword v{vT}, v{vTAG}, {sr(S_WS,2)} sc1")
    a.raw("    s_mov_b64 exec, -1")
    a.raw("B_noep:")
    for ct in range(4):
        a(f"v_cvt_pk_bf16_f32 v{48+2*ct}, v{AO+4*ct}, v{AO+4*ct+1}")
        a(f"v_cvt_pk_bf16_f32 v{49+2*ct}, v{AO+4*ct+2}, v{AO+4*ct+3}")
        a(f"ds_write_b64 v{vOW}, {vr(48+2*ct,2)} offset:{32*ct}")
    a.wait_lg()
    a(f"ds_read_b128 {vr(56,4)}, v{vOR}")
    a(f"ds_read_b128 {vr(60,4)}, v{vOR} offset:{8*144}")
    a(f"global_store_dwordx4 v{vOGp}, {vr(56,4)}, {sr(sOG,2)}")
    a(f"global_store_dwordx4 v{vOGp}, {vr(60,4)}, {sr(sOG+2,2)}")
    if Ctx.stamps or getattr(Ctx, "dfrom", None) is not None:
        a.wait_vm()
    stamp(a, 10)
    write_stamps(a, 11, 64, extra=(26, 27, sCNT))
    a("s_endpgm")
    flush_stubs(a)
```

```python
from emit import *

KNAME = "concat_heads__ssm_conv_s4__linear_kernel_hedgehog__prompt_kernel"

S_U, S_ARE, S_AIM, S_BRE, S_BIM, S_CRE, S_CIM, S_LDT = 4, 6, 8, 10, 12, 14, 16, 18
S_DSK, S_X, S_W, S_WPHI, S_WO, S_OUT, S_DBG, S_WS = 20, 22, 24, 26, 28, 30, 32, 34

WS_UT = 0
WS_YT = 2 << 20
WS_O = 4 << 20
WS_KVP = 6 << 20
KVP_STRIDE = 4096
WS_FL = 7 << 20
FL_FU = WS_FL + 65536
FL_FY = WS_FL + 196608
FL_FK = WS_FL + 8192
FL_FO = WS_FL + 12288
FL_EB = WS_FL + 16384
FL_EA = WS_FL + 16384 + 128
FL_FC = WS_FL + 32768
WS_DBG = 8 << 20

TAG_MUL = 0x9E3779B1
TAG_ADD = 0x7F4A7C15
SPIN_MAX = 400000


class Ctx:
    stamps = False
    dump = None


def poll_flags_old(a, name, vaddr, vtmp, sbase, stag, scnt, sleep=1):
    a.wait_vm()
    a(f"s_mov_b32 s{scnt}, 0")
    a.label(f"{name}_spin")
    a.raw(f"    global_load_dword v{vtmp}, v{vaddr}, {sr(sbase, 2)} sc1")
    a.raw(f"    s_add_u32 s{scnt}, s{scnt}, 1")
    a.raw(f"    s_cmp_gt_u32 s{scnt}, {SPIN_MAX}")
    a.raw(f"    s_cbranch_scc1 {name}_done")
    a.raw(f"    s_waitcnt vmcnt(0)")
    a.raw(f"    v_cmp_ne_u32 vcc, s{stag}, v{vtmp}")
    a.raw(f"    s_nop 1")
    a.raw(f"    s_cbranch_vccz {name}_done")
    if sleep:
        a.raw(f"    s_sleep {sleep}")
    a.raw(f"    s_branch {name}_spin")
    a.raw(f"{name}_done:")
    a.raw(f"    s_waitcnt vmcnt(0)")
    a.forget_vm = True
    a.vm = []


def store_flag(a, vaddr, vtag, sbase):
    a("s_mov_b64 exec, 1")
    a(f"global_store_dword v{vaddr}, v{vtag}, {sr(sbase, 2)} sc1")
    a("s_mov_b64 exec, -1")


def fine(a, grp, idx, sbase=80):
    if Ctx.stamps and getattr(Ctx, "grp", 0) == grp:
        a.raw(f"    s_memtime {sr(sbase + 2 * idx, 2)}")


def stamp(a, idx, sbase=80):
    diag_mark(a, idx)
    if Ctx.stamps and (idx == 0 or getattr(Ctx, "grp", 0) == 0):
        a(f"{'s_memtime' if Ctx.stamps == 'clk' else 's_memrealtime'} {sr(sbase + 2 * idx, 2)}")
        a.wait_lg()


def write_stamps(a, n, vt, sbase=80, extra=()):
    diag_end(a, "D%d" % vt)
    if not Ctx.stamps:
        return
    a.wait_all()
    a.raw("    s_waitcnt lgkmcnt(0)")
    a(f"v_lshrrev_b32 v{vt}, 6, v0")
    a(f"v_lshlrev_b32 v{vt}, 6, v{vt}")
    a(f"s_lshl_b32 s3, s2, 8")
    a(f"s_add_u32 s3, s3, {WS_DBG}")
    a(f"v_add_u32 v{vt}, s3, v{vt}")
    a("s_mov_b64 exec, 1")
    for i in range(n):
        a(f"v_mov_b32 v{vt + 1}, s{sbase + 2 * i}")
        a(f"global_store_dword v{vt}, v{vt + 1}, {sr(S_WS, 2)} offset:{4 * i}")
    for i, e in enumerate(extra):
        a(f"v_mov_b32 v{vt + 1}, s{e}")
        a(f"global_store_dword v{vt}, v{vt + 1}, {sr(S_WS, 2)} offset:{4 * (n + i)}")
    a("s_mov_b64 exec, -1")


def interleave(a, groups, fill, per):
    fill = list(fill)
    for g in groups:
        for t in g:
            a(t)
        for _ in range(per):
            if fill:
                a(fill.pop(0))
    return fill


class Retry:
    stubs = []


def checked(a, name, k, loads, regs, n, vtmp, scnt, sleep=0):
    if n == 4:
        a(f"v_max3_u32 v{vtmp}, v{regs}, v{regs+1}, v{regs+2}")
        a(f"v_max_u32 v{vtmp}, v{vtmp}, v{regs+3}")
    else:
        a(f"v_max3_u32 v{vtmp}, v{regs}, v{regs+1}, v{regs+2}")
    a(f"v_cmp_eq_u32 vcc, -1, v{vtmp}")
    a(f"s_cbranch_vccnz {name}_r{k}")
    a.raw(f"{name}_k{k}:")
    st = [f"{name}_r{k}:"]
    if sleep:
        st += [f"    s_sleep {sleep}"]
    st += ["    " + t for t in loads[k:]]
    st += [f"    s_add_u32 s{scnt}, s{scnt}, 1",
           f"    s_cmp_gt_u32 s{scnt}, {SPIN_MAX}",
           f"    s_waitcnt vmcnt(0)",
           f"    s_cbranch_scc1 {name}_k{k}",
           f"    v_max3_u32 v{vtmp}, v{regs}, v{regs+1}, v{regs+2}"]
    if n == 4:
        st += [f"    v_max_u32 v{vtmp}, v{vtmp}, v{regs+3}"]
    st += [f"    v_cmp_eq_u32 vcc, -1, v{vtmp}",
           f"    s_nop 1",
           f"    s_cbranch_vccnz {name}_r{k}",
           f"    s_branch {name}_k{k}"]
    Retry.stubs.append("\n".join(st))


def flag_check(a, name, vval, vaddr, sbase, stag, scnt, sleep=2):
    a(f"v_cmp_ne_u32 vcc, s{stag}, v{vval}")
    a(f"s_cbranch_vccnz {name}_r")
    a.raw(f"{name}_k:")
    Retry.stubs.append("\n".join([
        f"{name}_r:",
        f"    s_sleep {sleep}",
        f"    global_load_dword v{vval}, v{vaddr}, {sr(sbase,2)} sc1",
        f"    s_add_u32 s{scnt}, s{scnt}, 1",
        f"    s_cmp_gt_u32 s{scnt}, {SPIN_MAX}",
        "    s_waitcnt vmcnt(0)",
        f"    s_cbranch_scc1 {name}_k",
        f"    v_cmp_ne_u32 vcc, s{stag}, v{vval}",
        "    s_nop 1",
        f"    s_cbranch_vccnz {name}_r",
        f"    s_branch {name}_k"]))


def flush_stubs(a):
    for s in Retry.stubs:
        a.raw(s)
    Retry.stubs.clear()


def sbase(a, dst, src, soff):
    a(f"s_add_u32 s{dst}, s{src}, s{soff}")
    a(f"s_addc_u32 s{dst+1}, s{src+1}, 0")


def diag_mark(a, idx):
    d = getattr(Ctx, "dfrom", None)
    if d is None:
        return
    if idx == Ctx.dfrom:
        a("s_memrealtime s[98:99]")
        a.wait_lg()
    if idx == Ctx.dto:
        a("s_memrealtime s[100:101]")
        a.wait_lg()


def diag_end(a, name):
    d = getattr(Ctx, "dfrom", None)
    if d is None or getattr(Ctx, "drole", 0) not in (0, {"D64": 1, "D60": 2}[name]):
        return
    a.wait_all()
    a("s_sub_u32 s100, s100, s98")
    a(f"s_mul_i32 s100, s100, {getattr(Ctx, 'dmul', 1)}")
    a("s_memrealtime s[96:97]")
    a.wait_lg()
    a("s_add_u32 s100, s100, s96")
    a.raw(f"{name}_dg:")
    a.raw("    s_memrealtime s[96:97]")
    a.raw("    s_waitcnt lgkmcnt(0)")
    a.raw("    s_sub_u32 s96, s96, s100")
    a.raw("    s_cmp_lt_i32 s96, 0")
    a.raw(f"    s_cbranch_scc1 {name}_dg")


def code_prefetch(a, sw, t0, dst):
    if not getattr(Ctx, "spf", 1):
        return
    a(f"s_getpc_b64 {sr(t0,2)}")
    a.raw(f"{dst}_pc:")
    a(f"s_sub_u32 s{t0}, s{t0}, {dst}_pc-{KNAME}")
    a(f"s_subb_u32 s{t0+1}, s{t0+1}, 0")
    a(f"s_lshr_b32 s{t0+2}, s2, 3")
    a(f"s_lshl_b32 s{t0+2}, s{t0+2}, 2")
    a(f"s_add_u32 s{t0+2}, s{t0+2}, s{sw}")
    a(f"s_lshl_b32 s{t0+2}, s{t0+2}, 7")
    a(f"s_min_u32 s{t0+2}, s{t0+2}, CODE_BYTES-68")
    a(f"s_and_b32 s{t0+2}, s{t0+2}, -4")
    a(f"s_add_u32 s{t0}, s{t0}, s{t0+2}")
    a(f"s_addc_u32 s{t0+1}, s{t0+1}, 0")
    a(f"s_load_dword s{t0+2}, {sr(t0,2)}, 0")
    a(f"s_load_dword s{t0+3}, {sr(t0,2)}, 64")
```

```python
import sys
from gen_common import *
import gen_a
try:
    import gen_b
except ImportError:
    gen_b = None

HEADER = open("concat_heads__ssm_conv_s4__linear_kernel_hedgehog__prompt.s.ref").read().split("; @launch")[0]

def generate(do_a=True, do_b=True, prefetch=True):
    a = Asm()
    stamp(a, 0)
    a("s_cmp_ge_u32 s2, 512")
    a("s_cbranch_scc1 K_end")
    a("s_load_dwordx16 s[4:19], s[0:1], 0")
    a("s_load_dwordx16 s[20:35], s[0:1], 64")
    if prefetch:
        a("s_getpc_b64 s[36:37]")
        a("s_and_b32 s36, s36, 0xffffff00")
        a("s_lshr_b32 s38, s2, 3")
        a("s_lshl_b32 s38, s38, 9")
        a("v_lshrrev_b32 v1, 6, v0")
        a("v_lshl_add_u32 v1, v1, 7, s38")
        a("v_min_u32 v1, CODE_BYTES-4, v1")
        a("s_mov_b64 exec, 1")
        a("global_load_dword v255, v1, s[36:37]")
        a("s_mov_b64 exec, -1")
    if getattr(Ctx, "touch", False):
        a.wait_lg()
        a("v_lshlrev_b32 v2, 15, v0")
        a("v_and_b32 v2, 0x3fffff, v2")
        a("global_load_dword v254, v2, s[30:31]")
        a("v_and_b32 v2, 0x7ffff, v2")
        a("global_load_dword v253, v2, s[28:29]")
        a("v_lshlrev_b32 v2, 15, v0")
        a("global_load_dword v252, v2, s[34:35]")
    a("s_cmp_ge_u32 s2, 256")
    a("s_cbranch_scc1 K_conv")
    lg, vm = list(a.lg), list(a.vm)
    head = list(a.out)
    a.out = []
    if do_b and gen_b:
        gen_b.gen_b(a)
    else:
        a("s_endpgm")
    bt = a.out
    a.out = []
    a.hist = []
    a.raw("K_conv:")
    a.lg, a.vm = list(lg), list(vm)
    if do_a:
        gen_a.gen_a(a)
    else:
        a("s_endpgm")
    at = a.out

    def cut(t):
        if "@CUT" in t and getattr(Ctx, "layout", 1):
            i = t.index("@CUT")
            return t[:i], t[i + 1:]
        return [x for x in t if x != "@CUT"], None
    b1, b2 = cut(bt)
    a1, a2 = cut(at)
    out = head + b1
    if b2 is not None:
        out += ["    s_branch B_cont"]
    out += a1
    if a2 is not None:
        out += ["    s_branch A_cont"]
    if b2 is not None:
        out += ["B_cont:"] + b2
    if a2 is not None:
        out += ["A_cont:"] + a2
    a.out = out
    a.raw("K_end:")
    a.raw("    s_endpgm")
    a.raw("K_last:")
    import align
    body = '\n'.join(align.align(a.out)) + '\n' if getattr(Ctx, 'align', True) else a.text()
    txt = HEADER + f"""; @launch grid=(512,1,1) block=(256,1,1) lds=81920
.amdgcn_target "amdgcn-amd-amdhsa--gfx950"
.text
.globl {KNAME}
.p2align 8
.type {KNAME},@function
{KNAME}:
.set CODE_BYTES, K_last-{KNAME}
{body}
.section .rodata,"a"
.p2align 6
.amdhsa_kernel {KNAME}
  .amdhsa_next_free_vgpr 256
  .amdhsa_next_free_sgpr 102
  .amdhsa_accum_offset {getattr(Ctx,'accum',256)}
  .amdhsa_group_segment_fixed_size 0
  .amdhsa_kernarg_size 128
  .amdhsa_user_sgpr_count 2
  .amdhsa_user_sgpr_kernarg_segment_ptr 1
  .amdhsa_system_sgpr_workgroup_id_x 1
.end_amdhsa_kernel
"""
    return txt, a

if __name__ == "__main__":
    out = sys.argv[1]
    Ctx.stamps = "clk" if "clk" in sys.argv else ("stamps" in sys.argv)
    Ctx.rot = "norot" not in sys.argv
    Ctx.touch = "touch" in sys.argv
    for x in sys.argv:
        if "=" in x:
            k, v = x.split("="); setattr(Ctx, k, int(v))
    Ctx.align = "noalign" not in sys.argv
    txt, a = generate(do_a="noa" not in sys.argv, do_b="nob" not in sys.argv, prefetch="pf" in sys.argv)
    open(out, "w").write(txt)
    print("instructions", a.count, "nop states", a.nops)
```
